```python
import torch

def _softmax(x, axis=-1):
    return torch.softmax(x, dim=axis)
def _gelu(x):
    return torch.nn.functional.gelu(x, approximate="tanh")
def _silu(x):
    return torch.nn.functional.silu(x)
def _sigmoid(x):
    return torch.sigmoid(x)
def _layernorm(x, axis=-1, eps=1e-5):
    m = x.mean(dim=axis, keepdim=True)
    v = x.var(dim=axis, keepdim=True, unbiased=False)
    return (x - m) / torch.sqrt(v + eps)
def _scatter_add(tgt, idx, src, axis=0):
    return tgt.clone().index_add_(axis, idx, src)
def _segment_sum(src, seg, n):
    out = torch.zeros((n,) + src.shape[1:], dtype=src.dtype)
    return out.index_add_(0, seg, src)
def _pad(x, pw):
    flat = tuple(v for pair in reversed(pw) for v in pair)
    return torch.nn.functional.pad(x, flat)

kernel_name = 'gated_mix__gqa_block_cached__glu_gated_reglu__decode'

def setup_inputs():

    _w = (lambda a: (lambda t: t.to(torch.bfloat16) if t.is_floating_point() else t)(torch.as_tensor(a)))
    def _A_setup():
        B, Sq, D = 8, 1, 640
        Hq, Hkv, Sk, Dh = 32, 32, 4096, 128
        assert Hq % Hkv == 0, (Hq, Hkv)
        return {
            "x": _w((lambda *s: torch.randn(*s, dtype=torch.bfloat16) * 0.05)(B, Sq, D)),
            "k_cache": _w((lambda *s: torch.randn(*s, dtype=torch.bfloat16) * 3.2)(B, Hkv, Sk, Dh)),
            "v_cache": _w((lambda *s: torch.randn(*s, dtype=torch.bfloat16) * 0.05)(B, Hkv, Sk, Dh)),
            "wq": _w((lambda *s: torch.randn(*s, dtype=torch.bfloat16) * 3.2)(D, Hq * Dh) * (D ** -0.5)),
            "wo": _w((lambda *s: torch.randn(*s, dtype=torch.bfloat16) * 0.05)(Hq * Dh, D) * ((Hq * Dh) ** -0.5)),
        }
    _A_in = _A_setup()

    def _B_setup():
        B, S, D, F = 8, 1, 640, 1728
        return {
            "x": _w((lambda *s: torch.randn(*s, dtype=torch.bfloat16) * 0.05)(B, S, D)),
            "W_gate": _w((lambda *s: torch.randn(*s, dtype=torch.bfloat16) * 0.2)(D, F) * (2.0 / D) ** 0.5),
            "W_up": _w((lambda *s: torch.randn(*s, dtype=torch.bfloat16) * 0.2)(D, F) * (2.0 / D) ** 0.5),
            "W_down": _w((lambda *s: torch.randn(*s, dtype=torch.bfloat16) * 0.2)(F, D) * (1.0 / F) ** 0.5),
        }
    _B_in = _B_setup()

    return {
        "A_x": _A_in["x"],
        "A_k_cache": _A_in["k_cache"],
        "A_v_cache": _A_in["v_cache"],
        "A_wq": _A_in["wq"],
        "A_wo": _A_in["wo"],
        "B_x": _B_in["x"],
        "B_W_gate": _B_in["W_gate"],
        "B_W_up": _B_in["W_up"],
        "B_W_down": _B_in["W_down"],
        "gate_w": _w((lambda *s: torch.randn(*s, dtype=torch.bfloat16) * 0.05)(640) * 16.0),
    }

def reference(A_x, A_k_cache, A_v_cache, A_wq, A_wo, B_x, B_W_gate, B_W_up, B_W_down, gate_w):
    def _A_ref(x, k_cache, v_cache, wq, wo):
        B, Sq, D = x.shape
        Hq, Dh = 32, 128
        Hkv = k_cache.shape[1]
        rep = Hq // Hkv
        q = (lambda x, *d: x.permute(*d))((x @ wq).reshape(B, Sq, Hq, Dh), 0, 2, 1, 3)
        k = (lambda x, n, axis: torch.repeat_interleave(x, n, dim=axis))(k_cache, rep, axis=1)
        v = (lambda x, n, axis: torch.repeat_interleave(x, n, dim=axis))(v_cache, rep, axis=1)
        scores = torch.einsum("bhqd,bhkd->bhqk", q, k) * (Dh ** -0.5)
        p = _softmax(scores, axis=-1)
        o = torch.einsum("bhqk,bhkd->bhqd", p, v)
        return (lambda x, *d: x.permute(*d))(o, 0, 2, 1, 3).reshape(B, Sq, Hq * Dh) @ wo

    def _B_ref(x, W_gate, W_up, W_down):
        gate = torch.einsum("bsd,df->bsf", x, W_gate)
        up = torch.einsum("bsd,df->bsf", x, W_up)
        gate = gate * (lambda x, dt: x.to(dt))(gate > 0, gate.dtype)
        h = gate * up
        return torch.einsum("bsf,fd->bsd", h, W_down)

    x = A_x
    g = _sigmoid((x * gate_w).sum(-1, keepdims=True))
    a = _A_ref(x, A_k_cache, A_v_cache, A_wq, A_wo)
    b = _B_ref(x, B_W_gate, B_W_up, B_W_down)
    return g * a + (1 - g) * b
```

```python
import sys, math

NAME = "gated_mix__gqa_block_cached__glu_gated_reglu__decode_kernel"

class Asm:
    def __init__(self):
        self.L = []
    def __call__(self, s):
        for line in s.split("\n"):
            line = line.strip()
            if line:
                self.L.append(line)
    def label(self, s):
        self.L.append(s + ":")
    def text(self):
        return "\n".join(x if x.endswith(":") else "    " + x for x in self.L)

SC   = 0
QP   = 16384
FP   = QP + 2048
OP   = FP + 2048
ML   = OP + 2048
CNT  = ML + 64
YP   = CNT + 64
LDS_BYTES = YP + 4 * 2560

C_SCALE = math.log2(math.e) / math.sqrt(128.0)
def f2u(x):
    import struct
    return struct.unpack("<I", struct.pack("<f", x))[0]

def gen(R=4, D=2, kvpol="nt", stamp=False, dbg=False, prio=True):
    A = Asm()
    sB, sH, sW = "s30", "s31", "s32"
    A(f"""
    s_cmp_ge_u32 s2, 256
    s_cbranch_scc1 L_end
    s_load_dwordx16 s[4:19], s[0:1], 0
    s_load_dwordx8 s[20:27], s[0:1], 64
    s_load_dwordx2 s[28:29], s[0:1], 96
    """)
    if stamp:
        A("s_memrealtime s[90:91]")
    A(f"""
    v_lshrrev_b32 v1, 6, v0
    v_and_b32 v0, 63, v0
    v_readfirstlane_b32 {sW}, v1
    s_lshr_b32 {sB}, s2, 5
    s_and_b32 {sH}, s2, 31
    v_and_b32 v1, 15, v0
    v_lshrrev_b32 v2, 4, v0
    s_cmp_ge_u32 {sW}, 4
    s_cbranch_scc1 L_helper
    """)
    vOFF, vSCW, vSCR, vPRD, vT = "v3", "v4", "v5", "v6", "v7"
    Q = 8
    MSK = 12
    S = 16
    T01, T23, U, U2 = "v20", "v21", "v22", "v23"
    ACC = 24
    P = [28, 32]
    B = [36, 40]
    SS = 44
    vM, vL = "v60", "v61"
    RING = 64
    assert RING + 16 * R <= 256
    sK, sV = "s44", "s45"
    SRDK, SRDV = 36, 40
    if prio:
        A("s_setprio 2")
    A(f"""
    v_lshlrev_b32 {vOFF}, 4, v0
    s_lshl_b32 s33, s2, 20
    s_lshl_b32 {sK}, {sW}, 12
    s_mov_b32 {sV}, {sK}
    s_waitcnt lgkmcnt(0)
    s_add_u32 s36, s6, s33
    s_addc_u32 s37, s7, 0
    s_mov_b32 s38, 0x100000
    s_mov_b32 s39, 0x20000
    s_add_u32 s40, s8, s33
    s_addc_u32 s41, s9, 0
    s_mov_b32 s42, 0x100000
    s_mov_b32 s43, 0x20000
    """)
    def issue(n):
        slot = n % R
        r = RING + 16 * slot
        srd, so = (SRDK, sK) if n < 64 else (SRDV, sV)
        for j in range(4):
            A(f"buffer_load_dwordx4 v[{r+4*j}:{r+4*j+3}], {vOFF}, s[{srd}:{srd+3}], {so} offen offset:{1024*j} {kvpol}")
        A(f"s_add_u32 {so}, {so}, 16384")
    for n in range(R):
        issue(n)
    def build_masks(base, tmp0, tmp1):
        A(f"""
        v_and_b32 {tmp0}, 1, v1
        v_mov_b32 {tmp1}, 0xffff
        v_cmp_eq_u32 vcc, 1, {tmp0}
        v_mov_b32 {tmp0}, 0xffff0000
        s_nop 0
        v_cndmask_b32 {tmp0}, {tmp1}, {tmp0}, vcc
        v_lshrrev_b32 {tmp1}, 1, v1
        """)
        for r in range(4):
            A(f"""
            v_cmp_eq_u32 vcc, {r}, {tmp1}
            s_nop 1
            v_cndmask_b32 v{base+r}, 0, {tmp0}, vcc
            """)
    build_masks(MSK, "v44", "v45")
    A(f"""
    v_bfe_u32 v44, v0, 2, 1
    v_bfe_u32 v45, v0, 3, 1
    v_lshl_or_b32 v44, v44, 1, v45
    v_lshlrev_b32 v44, 2, v44
    v_lshl_or_b32 v44, v2, 4, v44
    s_lshl_b32 s46, {sW}, 12
    v_add_u32 {vSCW}, s46, v44
    v_lshlrev_b32 v45, 4, v0
    v_add_u32 {vSCR}, s46, v45
    v_lshlrev_b32 v45, 4, v2
    v_add_u32 {vPRD}, s46, v45
    v_lshlrev_b32 {vT}, 5, v1
    """)
    A("s_barrier")
    for w in range(4):
        A(f"ds_read_b128 v[{SS+0+8*(w%2)}:{SS+3+8*(w%2)}], {vT} offset:{QP+w*512}")
        A(f"ds_read_b128 v[{SS+4+8*(w%2)}:{SS+7+8*(w%2)}], {vT} offset:{QP+w*512+16}")
        if w == 1:
            A("s_waitcnt lgkmcnt(0)")
            for i in range(8):
                A(f"v_add_f32 v{16+i}, v{SS+i}, v{SS+8+i}")
    A("s_waitcnt lgkmcnt(0)")
    for i in range(8):
        A(f"v_add_f32 v{SS+i}, v{SS+i}, v{SS+8+i}")
    for i in range(8):
        A(f"v_add_f32 v{SS+i}, v{SS+i}, v{16+i}")
    for r in range(4):
        A(f"v_cvt_pk_bf16_f32 v{Q+r}, v{SS+2*r}, v{SS+2*r+1}")
    if dbg:
        A(f"""
        s_cmp_eq_u32 {sW}, 0
        s_cbranch_scc0 L_nodq
        s_add_u32 s48, s28, 0x100000
        s_addc_u32 s49, s29, 0
        s_mov_b32 s50, 0x100000
        s_mov_b32 s51, 0x20000
        s_lshl_b32 s46, s2, 8
        v_lshlrev_b32 v44, 4, v1
        v_add_u32 v44, s46, v44
        buffer_store_dwordx4 v[{Q}:{Q+3}], v44, s[48:51], 0 offen
        s_waitcnt vmcnt(0)
        """)
        A.label("L_nodq")
    A("s_nop 1")

    def wait_vm(n_younger_tiles):
        A(f"s_waitcnt vmcnt({4*n_younger_tiles})")

    def kstep(n, slot, younger, issue_n, ldsoff):
        r = RING + 16 * slot
        wait_vm(younger)
        for rr in range(4):
            for j in range(4):
                c = "0" if rr == 0 else f"v{S+j}"
                A(f"v_dot2_f32_bf16 v{S+j}, v{r+4*j+rr}, v{Q+rr}, {c}")
        if issue_n is not None:
            issue(issue_n)
        else:
            A("s_nop 3")
        A(f"""
        v_add_f32_dpp {T01}, v{S+0}, v{S+0} row_ror:8 row_mask:0xf bank_mask:0x3
        v_add_f32_dpp {T01}, v{S+1}, v{S+1} row_ror:8 row_mask:0xf bank_mask:0xc
        v_add_f32_dpp {T23}, v{S+2}, v{S+2} row_ror:8 row_mask:0xf bank_mask:0x3
        v_add_f32_dpp {T23}, v{S+3}, v{S+3} row_ror:8 row_mask:0xf bank_mask:0xc
        s_nop 0
        v_add_f32_dpp {U}, {T01}, {T01} row_half_mirror row_mask:0xf bank_mask:0x5
        v_add_f32_dpp {U}, {T23}, {T23} row_half_mirror row_mask:0xf bank_mask:0xa
        s_nop 1
        v_add_f32_dpp {U2}, {U}, {U} quad_perm:[1,0,3,2] row_mask:0xf bank_mask:0xf
        s_nop 1
        v_add_f32_dpp {U}, {U2}, {U2} quad_perm:[2,3,0,1] row_mask:0xf bank_mask:0xf
        ds_write_b32 {vSCW}, {U} offset:{ldsoff}
        """)

    def younger_at(n):
        last = max(R - 1, n - 1 + D)
        last = min(last, 127)
        return last - n
    def issue_at(n):
        t = n + D
        if t < R or t > 127:
            return None
        return t
    for n in range(R):
        kstep(n, n % R, younger_at(n), issue_at(n), n * 64)
    kK = (64 - R - D) // R
    n0 = R
    if kK > 0:
        A(f"s_mov_b32 s47, {kK}")
        A(f"v_add_u32 {vSCW}, {n0*64}, {vSCW}")
        A.label("L_kloop")
        for i in range(R):
            n = n0 + i
            kstep(n, n % R, younger_at(n), issue_at(n), i * 64)
        A(f"""
        v_add_u32 {vSCW}, {R*64}, {vSCW}
        s_sub_u32 s47, s47, 1
        s_cmp_lg_u32 s47, 0
        s_cbranch_scc1 L_kloop
        """)
        n1 = n0 + kK * R
        base_off = n1
    else:
        n1 = n0
        base_off = 0
    for n in range(n1, 64):
        kstep(n, n % R, younger_at(n), issue_at(n), (n - base_off) * 64)

    for i in range(4):
        A(f"ds_read_b128 v[{SS+4*i}:{SS+4*i+3}], {vSCR} offset:{1024*i}")
    A("s_waitcnt lgkmcnt(0)")
    A(f"v_max3_f32 {vM}, v{SS}, v{SS+1}, v{SS+2}")
    for i in range(3, 15, 2):
        A(f"v_max3_f32 {vM}, {vM}, v{SS+i}, v{SS+i+1}")
    A(f"v_max_f32 {vM}, {vM}, v{SS+15}")
    def allreduce(op, v, tmp):
        for rot in (8, 4, 2, 1):
            A("s_nop 1")
            A(f"{op}_dpp {v}, {v}, {v} row_ror:{rot} row_mask:0xf bank_mask:0xf")
        A(f"v_mov_b32 {tmp}, {v}")
        A("s_nop 1")
        A(f"v_permlane16_swap_b32 {tmp}, {v}")
        A("s_nop 1")
        A(f"{op} {v}, {v}, {tmp}")
        A(f"v_mov_b32 {tmp}, {v}")
        A("s_nop 1")
        A(f"v_permlane32_swap_b32 {tmp}, {v}")
        A("s_nop 1")
        A(f"{op} {v}, {v}, {tmp}")
    allreduce("v_max_f32", vM, "v62")
    A(f"s_mov_b32 s46, {hex(f2u(C_SCALE))}")
    A(f"v_mul_f32 v62, s46, {vM}")
    for i in range(16):
        A(f"v_fma_f32 v{SS+i}, v{SS+i}, s46, -v62")
    for i in range(16):
        A(f"v_exp_f32 v{SS+i}, v{SS+i}")
    A("s_nop 0")
    A(f"v_add_f32 {vL}, v{SS}, v{SS+1}")
    for i in range(2, 16):
        A(f"v_add_f32 {vL}, {vL}, v{SS+i}")
    for i in range(16):
        A(f"v_cvt_pk_bf16_f32 v{SS+i}, v{SS+i}, v{SS+i}")
    for i in range(4):
        A(f"ds_write_b128 {vSCR}, v[{SS+4*i}:{SS+4*i+3}] offset:{1024*i}")
    A(f"ds_read_b128 v[{P[0]}:{P[0]+3}], {vPRD} offset:0")
    allreduce("v_add_f32", vL, "v62")

    def vstep(n, first, younger, issue_n, pin, pnext_off):
        slot = n % R
        r = RING + 16 * slot
        Pc = P[pin]; Pn = P[pin ^ 1]
        A(f"s_waitcnt vmcnt({4*younger}) lgkmcnt(0)")
        if pnext_off is not None:
            A(f"ds_read_b128 v[{Pn}:{Pn+3}], {vPRD} offset:{pnext_off}")
        def bld(j):
            for rr in range(4):
                A(f"v_and_b32 v{B[j&1]+rr}, v{Pc+j}, v{MSK+rr}")
        def mf(j):
            c = "0" if (first and j == 0) else f"v[{ACC}:{ACC+3}]"
            A(f"v_mfma_f32_16x16x32_bf16 v[{ACC}:{ACC+3}], v[{r+4*j}:{r+4*j+3}], v[{B[j&1]}:{B[j&1]+3}], {c}")
        bld(0); bld(1); mf(0); bld(2); mf(1); bld(3); mf(2); A("s_nop 0"); mf(3)
        if issue_n is not None:
            issue(issue_n)
    kV = (64 - D) // R
    RV = R if R % 2 == 0 else 2 * R
    kV = (64 - D - 1) // RV
    for i in range(4):
        A(f"v_mov_b32 v{ACC+i}, 0")
    nv0 = 64
    if kV > 0:
        A(f"s_mov_b32 s47, {kV}")
        A.label("L_vloop")
        for i in range(RV):
            n = nv0 + i
            vstep(n, False, younger_at(n), issue_at(n), i & 1, (i + 1) * 64)
        A(f"""
        v_add_u32 {vPRD}, {RV*64}, {vPRD}
        s_sub_u32 s47, s47, 1
        s_cmp_lg_u32 s47, 0
        s_cbranch_scc1 L_vloop
        """)
        nv1 = nv0 + kV * RV
    else:
        nv1 = nv0
    for n in range(nv1, 128):
        vstep(n, False, younger_at(n), issue_at(n), (n - 64) & 1, ((n - nv1 + 1) * 64) if n < 127 else None)
    A(f"""
    v_lshlrev_b32 v44, 7, v2
    v_lshl_or_b32 v44, v1, 2, v44
    s_lshl_b32 s46, {sW}, 9
    v_add_u32 v44, s46, v44
    s_lshl_b32 s46, {sW}, 3
    v_mov_b32 v45, s46
    s_nop 7
    s_mov_b32 exec_lo, 0x00ff00ff
    s_mov_b32 exec_hi, 0x00ff00ff
    """)
    for r in range(4):
        A(f"ds_write_b32 v44, v{ACC+r} offset:{OP + 32*r}")
    A(f"""
    s_mov_b64 exec, 1
    ds_write_b64 v45, v[60:61] offset:{ML}
    s_mov_b64 exec, -1
    s_waitcnt lgkmcnt(0)
    s_barrier
    s_branch L_join
    """)

    A.label("L_helper")
    X = 8
    SEL = 28
    HM = 36
    HB = [40, 44]
    HACC = 48
    W = 80
    vA, vB_, vC = "v3", "v4", "v5"
    sWH = "s33"
    SX, SW1, SW2, SZ = 36, 40, 44, 48
    A(f"""
    s_sub_u32 {sWH}, {sW}, 4
    s_mul_i32 s52, {sB}, 1280
    s_mul_i32 s53, {sWH}, 320
    v_mul_u32_u24 v3, 80, v2
    v_add_u32 v3, s53, v3
    v_lshlrev_b32 v6, 5, v0
    s_mul_i32 s53, {sWH}, {160*8192}
    v_mul_u32_u24 v4, 40, v2
    v_lshlrev_b32 v4, 13, v4
    v_lshl_or_b32 v4, v1, 4, v4
    v_add_u32 v4, s53, v4
    s_lshl_b32 s54, {sH}, 8
    s_waitcnt lgkmcnt(0)
    s_add_u32 s36, s4, s52
    s_addc_u32 s37, s5, 0
    s_mov_b32 s38, 1280
    s_mov_b32 s39, 0x20000
    s_add_u32 s40, s10, s54
    s_addc_u32 s41, s11, 0
    s_sub_u32 s42, {640*8192}, s54
    s_mov_b32 s43, 0x20000
    s_mov_b32 s48, s22
    s_mov_b32 s49, s23
    s_mov_b32 s50, 1280
    s_mov_b32 s51, 0x20000
    """)
    for i in range(5):
        A(f"buffer_load_dwordx4 v[{X+4*i}:{X+4*i+3}], v3, s[36:39], 0 offen offset:{16*i}")
    A("s_mov_b32 s55, 0")
    for j in range(40):
        A(f"buffer_load_dwordx4 v[{W+4*j}:{W+4*j+3}], v4, s[40:43], s55 offen")
        if j < 39:
            A("s_add_u32 s55, s55, 8192")
    A(f"""
    buffer_load_dwordx4 v[68:71], v6, s[36:39], 0 offen
    buffer_load_dwordx4 v[72:75], v6, s[36:39], 0 offen offset:16
    buffer_load_dwordx4 v[240:243], v6, s[48:51], 0 offen
    buffer_load_dwordx4 v[244:247], v6, s[48:51], 0 offen offset:16
    """)
    NEXTRA = 4
    build_masks(HM, "v5", "v7")
    A(f"""
    v_and_b32 v5, 1, v1
    v_cmp_eq_u32 vcc, 1, v5
    v_mov_b32 v5, 0x0c0c0100
    v_mov_b32 v7, 0x01000c0c
    v_cndmask_b32 v76, v5, v7, vcc
    v_mov_b32 v5, 0x0c0c0302
    v_mov_b32 v7, 0x03020c0c
    v_cndmask_b32 v77, v5, v7, vcc
    v_lshrrev_b32 v5, 1, v1
    v_mov_b32 v7, 0x0c0c0c0c
    """)
    for r in range(4):
        A(f"""
        v_cmp_eq_u32 vcc, {r}, v5
        s_nop 1
        v_cndmask_b32 v{SEL+r}, v7, v76, vcc
        v_cndmask_b32 v{SEL+4+r}, v7, v77, vcc
        """)
    A(f"""
    v_mov_b32 v5, 0
    v_mov_b32 v7, {CNT}
    s_cmp_eq_u32 {sWH}, 0
    s_cbranch_scc0 L_nocnt
    s_mov_b64 exec, 1
    ds_write_b32 v7, v5
    s_mov_b64 exec, -1
    """)
    A.label("L_nocnt")
    def bperm(j, dst):
        xr = X + (j >> 1)
        so = SEL + 4 * (j & 1)
        for r in range(4):
            A(f"v_perm_b32 v{dst+r}, v{xr}, v{xr}, v{so+r}")
    def gemv40(acc, waitfn):
        waitfn(-1)
        bperm(0, HB[0])
        for j in range(40):
            if j + 1 < 40:
                bperm(j + 1, HB[(j + 1) & 1])
            else:
                A("s_nop 1")
            waitfn(j)
            c = "0" if j == 0 else f"v[{acc}:{acc+3}]"
            A(f"v_mfma_f32_16x16x32_bf16 v[{acc}:{acc+3}], v[{W+4*j}:{W+4*j+3}], v[{HB[j&1]}:{HB[j&1]+3}], {c}")
    def wq_wait(j):
        if j < 0:
            A(f"s_waitcnt vmcnt({40+NEXTRA})")
        else:
            A(f"s_waitcnt vmcnt({39-j+NEXTRA})")
    gemv40(HACC, wq_wait)
    A(f"""
    v_lshlrev_b32 v5, 7, v2
    v_lshl_or_b32 v5, v1, 2, v5
    s_lshl_b32 s55, {sWH}, 9
    v_add_u32 v5, s55, v5
    s_nop 7
    s_mov_b32 exec_lo, 0x00ff00ff
    s_mov_b32 exec_hi, 0x00ff00ff
    """)
    for r in range(4):
        A(f"ds_write_b32 v5, v{HACC+r} offset:{QP + 32*r}")
    A("""
    s_mov_b64 exec, -1
    s_waitcnt lgkmcnt(0)
    s_barrier
    s_setprio 0
    """)
    A("s_waitcnt vmcnt(0)")
    A("v_dot2_f32_bf16 v6, v68, v240, 0")
    for i in range(1, 4):
        A(f"v_dot2_f32_bf16 v6, v{68+i}, v{240+i}, v6")
    for i in range(4):
        A(f"v_dot2_f32_bf16 v6, v{72+i}, v{244+i}, v6")
    A("s_nop 2")
    allreduce("v_add_f32", "v6", "v7")
    A(f"""
    v_mul_f32 v6, {hex(f2u(-math.log2(math.e)))}, v6
    v_exp_f32 v6, v6
    s_nop 0
    v_add_f32 v6, 1.0, v6
    v_rcp_f32 v78, v6
    s_nop 0
    v_sub_f32 v79, 1.0, v78
    """)
    vG, vG1 = "v78", "v79"
    A(f"""
    s_cmp_ge_u32 {sH}, 27
    s_cbranch_scc1 L_noffn
    s_lshl_b32 s54, {sH}, 7
    s_add_u32 s40, s16, s54
    s_addc_u32 s41, s17, 0
    s_sub_u32 s42, {640*3456}, s54
    s_add_u32 s44, s18, s54
    s_addc_u32 s45, s19, 0
    s_mov_b32 s46, s42
    s_mov_b32 s47, 0x20000
    s_mul_i32 s53, {sWH}, {160*3456}
    v_mul_u32_u24 v4, {40*3456}, v2
    v_and_b32 v6, 7, v1
    v_lshl_add_u32 v4, v6, 4, v4
    v_add_u32 v4, s53, v4
    """)
    def ffn_issue(j0, j1):
        A("s_mov_b32 exec_lo, 0x00ff00ff")
        A("s_mov_b32 exec_hi, 0x00ff00ff")
        A(f"s_mov_b32 s55, {j0*3456}")
        for j in range(j0, j1):
            A(f"buffer_load_dwordx4 v[{W+4*j}:{W+4*j+3}], v4, s[40:43], s55 offen")
            A("s_add_u32 s55, s55, 3456")
        A("s_mov_b32 exec_lo, 0xff00ff00")
        A("s_mov_b32 exec_hi, 0xff00ff00")
        A(f"s_mov_b32 s55, {j0*3456}")
        for j in range(j0, j1):
            A(f"buffer_load_dwordx4 v[{W+4*j}:{W+4*j+3}], v4, s[44:47], s55 offen")
            A("s_add_u32 s55, s55, 3456")
        A("s_mov_b64 exec, -1")
    ffn_issue(0, 20)
    A("s_waitcnt vmcnt(0)")
    ffn_issue(20, 40)
    def ffn_wait(j):
        if j == 20:
            A("s_waitcnt vmcnt(0)")
    gemv40(HACC, ffn_wait)
    A(f"""
    s_mul_i32 s54, {sH}, {64*1280}
    s_add_u32 s40, s20, s54
    s_addc_u32 s41, s21, 0
    s_mov_b32 s42, {64*1280}
    s_mul_i32 s53, {sWH}, {16*1280}
    v_mul_u32_u24 v4, {4*1280}, v2
    v_lshl_add_u32 v4, v1, 4, v4
    v_add_u32 v4, s53, v4
    """)
    for m in range(4):
        A(f"s_mov_b32 s55, {m*1280}")
        for c in range(5):
            k = m * 5 + c
            A(f"buffer_load_dwordx4 v[{W+4*k}:{W+4*k+3}], v4, s[40:43], s55 offen offset:{256*c}")
    A("s_mov_b32 exec_lo, 0x00ff00ff")
    A("s_mov_b32 exec_hi, 0x00ff00ff")
    for r in range(4):
        A(f"ds_write_b32 v5, v{HACC+r} offset:{FP + 32*r}")
    A(f"""
    s_waitcnt lgkmcnt(0)
    s_mov_b64 exec, -1
    v_mov_b32 v6, 1
    v_mov_b32 v7, {CNT}
    s_mov_b64 exec, 1
    ds_add_u32 v7, v6
    s_mov_b64 exec, -1
    """)
    A.label("L_spin")
    A(f"""
    ds_read_b32 v6, v7
    s_waitcnt lgkmcnt(0)
    v_readfirstlane_b32 s55, v6
    s_nop 3
    s_cmp_ge_u32 s55, 4
    s_cbranch_scc1 L_spun
    s_sleep 2
    s_branch L_spin
    """)
    A.label("L_spun")
    A(f"""
    s_lshl_b32 s55, {sWH}, 6
    v_lshlrev_b32 v6, 4, v2
    v_add_u32 v6, s55, v6
    """)
    A(f"ds_read_b128 v[8:11], v6 offset:{FP}")
    A(f"ds_read_b128 v[12:15], v6 offset:{FP+256}")
    for w in range(1, 4):
        A(f"ds_read_b128 v[16:19], v6 offset:{FP+512*w}")
        A(f"ds_read_b128 v[20:23], v6 offset:{FP+512*w+256}")
        A("s_waitcnt lgkmcnt(0)")
        for i in range(8):
            A(f"v_add_f32 v{8+i}, v{8+i}, v{16+i}")
    for m in range(4):
        A(f"v_max_f32 v{8+m}, 0, v{8+m}")
    for m in range(4):
        A(f"v_mul_f32 v{8+m}, v{8+m}, v{12+m}")
    for m in range(4):
        A(f"v_cvt_pk_bf16_f32 v{8+m}, v{8+m}, v{8+m}")
    A("s_waitcnt vmcnt(0)")
    for m in range(4):
        hb = HB[m & 1]
        for r in range(4):
            A(f"v_and_b32 v{hb+r}, v{8+m}, v{HM+r}")
        A("s_nop 1")
        for c in range(5):
            k = m * 5 + c
            cc = "0" if m == 0 else f"v[{HACC+4*c}:{HACC+4*c+3}]"
            A(f"v_mfma_f32_16x16x32_bf16 v[{HACC+4*c}:{HACC+4*c+3}], v[{W+4*k}:{W+4*k+3}], v[{hb}:{hb+3}], {cc}")
    A("s_nop 7")
    A("s_nop 1")
    for i in range(20):
        A(f"v_mul_f32 v{HACC+i}, {vG1}, v{HACC+i}")
    A("s_branch L_ffndone")
    A.label("L_noffn")
    for i in range(20):
        A(f"v_mov_b32 v{HACC+i}, 0")
    A.label("L_ffndone")
    A(f"""
    s_mul_i32 s54, {sH}, {128*1280}
    s_add_u32 s40, s12, s54
    s_addc_u32 s41, s13, 0
    s_mov_b32 s42, {128*1280}
    s_mov_b32 s43, 0x20000
    s_mul_i32 s53, {sWH}, {32*1280}
    v_mul_u32_u24 v4, {8*1280}, v2
    v_lshl_add_u32 v4, v1, 4, v4
    v_add_u32 v4, s53, v4
    """)
    for m in range(8):
        A(f"s_mov_b32 s55, {m*1280}")
        for c in range(5):
            k = m * 5 + c
            A(f"buffer_load_dwordx4 v[{W+4*k}:{W+4*k+3}], v4, s[40:43], s55 offen offset:{256*c}")
    A(f"""
    s_lshl_b32 s55, {sWH}, 7
    v_lshlrev_b32 v6, 5, v2
    v_add_u32 v6, s55, v6
    v_mov_b32 v7, 0
    s_mul_i32 s55, {sWH}, 2560
    v_lshlrev_b32 v5, 7, v2
    v_lshl_or_b32 v5, v1, 2, v5
    v_add_u32 v5, s55, v5
    s_waitcnt vmcnt(0)
    s_setprio 2
    s_barrier
    """)
    A(f"ds_read_b128 v[8:11], v7 offset:{ML}")
    A(f"ds_read_b128 v[12:15], v7 offset:{ML+16}")
    OB = 240
    A(f"ds_read_b128 v[16:19], v6 offset:{OP}")
    A(f"ds_read_b128 v[20:23], v6 offset:{OP+16}")
    A(f"ds_read_b128 v[240:243], v6 offset:{OP+512}")
    A(f"ds_read_b128 v[244:247], v6 offset:{OP+512+16}")
    A(f"ds_read_b128 v[248:251], v6 offset:{OP+1024}")
    A(f"ds_read_b128 v[252:255], v6 offset:{OP+1024+16}")
    A(f"ds_read_b128 v[28:31], v6 offset:{OP+1536}")
    A(f"ds_read_b128 v[32:35], v6 offset:{OP+1536+16}")
    A("s_waitcnt lgkmcnt(8)")
    A(f"""
    v_max3_f32 v24, v8, v10, v12
    v_max_f32 v24, v24, v14
    s_mov_b32 s55, {hex(f2u(C_SCALE))}
    v_sub_f32 v8, v8, v24
    v_sub_f32 v10, v10, v24
    v_sub_f32 v12, v12, v24
    v_sub_f32 v14, v14, v24
    v_mul_f32 v8, s55, v8
    v_mul_f32 v10, s55, v10
    v_mul_f32 v12, s55, v12
    v_mul_f32 v14, s55, v14
    v_exp_f32 v8, v8
    v_exp_f32 v10, v10
    v_exp_f32 v12, v12
    v_exp_f32 v14, v14
    s_nop 0
    v_mul_f32 v25, v8, v9
    v_fmac_f32 v25, v10, v11
    v_fmac_f32 v25, v12, v13
    v_fmac_f32 v25, v14, v15
    v_rcp_f32 v25, v25
    s_nop 0
    v_mul_f32 v25, v25, {vG}
    v_mul_f32 v8, v8, v25
    v_mul_f32 v10, v10, v25
    v_mul_f32 v12, v12, v25
    v_mul_f32 v14, v14, v25
    s_waitcnt lgkmcnt(0)
    """)
    for i in range(8):
        A(f"v_mul_f32 v{68+i}, v8, v{16+i}")
    for i in range(8):
        A(f"v_fmac_f32 v{68+i}, v10, v{240+i}")
    for i in range(8):
        A(f"v_fmac_f32 v{68+i}, v12, v{248+i}")
    for i in range(8):
        A(f"v_fmac_f32 v{68+i}, v14, v{28+i}")
    if dbg:
        A(f"""
        s_add_u32 s48, s28, 0x200000
        s_addc_u32 s49, s29, 0
        s_mov_b32 s50, 0x100000
        s_mov_b32 s51, 0x20000
        s_lshl_b32 s55, s2, 9
        v_add_u32 v26, s55, v6
        buffer_store_dwordx4 v[68:71], v26, s[48:51], 0 offen
        buffer_store_dwordx4 v[72:75], v26, s[48:51], 0 offen offset:16
        s_waitcnt vmcnt(0)
        """)
    for i in range(8):
        A(f"v_cvt_pk_bf16_f32 v{68+i}, v{68+i}, v{68+i}")
    for m in range(8):
        hb = HB[m & 1]
        for r in range(4):
            A(f"v_and_b32 v{hb+r}, v{68+m}, v{HM+r}")
        A("s_nop 1")
        for c in range(5):
            k = m * 5 + c
            A(f"v_mfma_f32_16x16x32_bf16 v[{HACC+4*c}:{HACC+4*c+3}], v[{W+4*k}:{W+4*k+3}], v[{hb}:{hb+3}], v[{HACC+4*c}:{HACC+4*c+3}]")
    A("""
    s_nop 7
    s_mov_b32 exec_lo, 0x00ff00ff
    s_mov_b32 exec_hi, 0x00ff00ff
    """)
    for c in range(5):
        for r in range(4):
            A(f"ds_write_b32 v5, v{HACC+4*c+r} offset:{YP + 512*c + 32*r}")
    A("""
    s_mov_b64 exec, -1
    s_waitcnt lgkmcnt(0)
    """)
    A.label("L_join")
    A(f"""
    s_barrier
    s_cmp_ge_u32 {sW}, 5
    s_cbranch_scc1 L_end
    s_lshl_b32 s52, {sW}, 9
    v_lshlrev_b32 v3, 4, v0
    v_add_u32 v3, s52, v3
    s_mov_b32 exec_hi, 0
    ds_read_b128 v[8:11], v3 offset:{YP}
    ds_read_b128 v[12:15], v3 offset:{YP+2560}
    ds_read_b128 v[16:19], v3 offset:{YP+5120}
    ds_read_b128 v[20:23], v3 offset:{YP+7680}
    s_mul_i32 s53, {sB}, {32*2560}
    s_add_u32 s36, s28, s53
    s_addc_u32 s37, s29, 0
    s_mov_b32 s38, {32*2560}
    s_mov_b32 s39, 0x20000
    s_mul_i32 s53, {sH}, 2560
    s_add_u32 s53, s53, s52
    v_lshlrev_b32 v4, 4, v0
    s_waitcnt lgkmcnt(0)
    """)
    for i in range(4):
        A(f"v_add_f32 v{8+i}, v{8+i}, v{12+i}")
        A(f"v_add_f32 v{16+i}, v{16+i}, v{20+i}")
    for i in range(4):
        A(f"v_add_f32 v{8+i}, v{8+i}, v{16+i}")
    A(f"""
    buffer_store_dwordx4 v[8:11], v4, s[36:39], s53 offen sc1
    s_mul_i32 s54, {sB}, 5
    s_add_u32 s54, s54, {sW}
    s_lshl_b32 s54, s54, 2
    s_mov_b32 s40, s26
    s_mov_b32 s41, s27
    s_mov_b32 s42, 256
    s_mov_b32 s43, 0x20000
    v_mov_b32 v5, s54
    v_mov_b32 v6, 1
    s_waitcnt vmcnt(0)
    s_mov_b64 exec, 1
    buffer_atomic_add v6, v5, s[40:43], 0 offen sc0
    s_waitcnt vmcnt(0)
    v_readfirstlane_b32 s55, v6
    s_mov_b64 exec, -1
    s_nop 3
    s_cmp_eq_u32 s55, 31
    s_cbranch_scc0 L_end
    v_lshrrev_b32 v5, 5, v0
    v_mul_u32_u24 v5, 2560, v5
    v_and_b32 v6, 31, v0
    v_lshl_add_u32 v5, v6, 4, v5
    s_mov_b32 s53, s52
    """)
    for i in range(16):
        A(f"buffer_load_dwordx4 v[{8+4*i}:{8+4*i+3}], v5, s[36:39], s53 offen sc1")
        if i < 15:
            A("s_add_u32 s53, s53, 5120")
    for i in range(1, 16):
        A(f"s_waitcnt vmcnt({15-i})")
        for k in range(4):
            A(f"v_add_f32 v{8+k}, v{8+k}, v{8+4*i+k}")
    for k in range(4):
        A(f"v_mov_b32 v{12+k}, v{8+k}")
    A("s_nop 1")
    for k in range(4):
        A(f"v_permlane32_swap_b32 v{12+k}, v{8+k}")
    A("s_nop 1")
    for k in range(4):
        A(f"v_add_f32 v{8+k}, v{8+k}, v{12+k}")
    A(f"""
    v_cvt_pk_bf16_f32 v8, v8, v9
    v_cvt_pk_bf16_f32 v9, v10, v11
    s_mul_i32 s53, {sB}, 1280
    s_lshl_b32 s54, {sW}, 8
    s_add_u32 s53, s53, s54
    s_mov_b32 s44, s24
    s_mov_b32 s45, s25
    s_mov_b32 s46, 10240
    s_mov_b32 s47, 0x20000
    v_lshlrev_b32 v4, 3, v0
    s_mov_b32 exec_hi, 0
    buffer_store_dwordx2 v[8:9], v4, s[44:47], s53 offen
    """)
    A.label("L_end")
    A("s_endpgm")
    return A.text()

HEADER = open("gated_mix__gqa_block_cached__glu_gated_reglu__decode.s.ref").read().split("; Override launch")[0]

def full(body, lds, vgpr=256, sgpr=102):
    return (HEADER + f"; @launch grid=(256,1,1) block=(512,1,1) lds={lds}\n"
        + '.amdgcn_target "amdgcn-amd-amdhsa--gfx950"\n.text\n'
        + f".globl {NAME}\n.p2align 8\n.type {NAME},@function\n{NAME}:\n" + body + "\n"
        + '.section .rodata,"a"\n.p2align 6\n'
        + f".amdhsa_kernel {NAME}\n  .amdhsa_next_free_vgpr {vgpr}\n  .amdhsa_next_free_sgpr {sgpr}\n  .amdhsa_accum_offset {vgpr}\n"
        + "  .amdhsa_group_segment_fixed_size 0\n  .amdhsa_kernarg_size 104\n  .amdhsa_user_sgpr_count 2\n"
        + "  .amdhsa_user_sgpr_kernarg_segment_ptr 1\n  .amdhsa_system_sgpr_workgroup_id_x 1\n.end_amdhsa_kernel\n")

if __name__ == "__main__":
    import argparse
    ap = argparse.ArgumentParser()
    ap.add_argument("-o", default="gated_mix__gqa_block_cached__glu_gated_reglu__decode.s")
    ap.add_argument("--R", type=int, default=4)
    ap.add_argument("--D", type=int, default=2)
    ap.add_argument("--pol", default="nt")
    ap.add_argument("--dbg", action="store_true")
    a = ap.parse_args()
    open(a.o, "w").write(full(gen(R=a.R, D=a.D, kvpol=a.pol, dbg=a.dbg), LDS_BYTES))
    print("wrote", a.o, "lds", LDS_BYTES)
```

```python
import sys, math

NAME = "gated_mix__gqa_block_cached__glu_gated_reglu__decode_kernel"

class Asm:
    def __init__(self):
        self.L = []
    def __call__(self, s):
        for line in s.split("\n"):
            line = line.strip()
            if line:
                self.L.append(line)
    def label(self, s):
        self.L.append(s + ":")
    def text(self):
        return "\n".join(x if x.endswith(":") else "    " + x for x in self.L)

SC   = 0
QP   = 16384
FP   = QP + 2048
OP   = FP + 2048
ML   = OP + 2048
CNT  = ML + 64
YP   = CNT + 64
LDS_BYTES = YP + 4 * 2560

C_SCALE = math.log2(math.e) / math.sqrt(128.0)
def f2u(x):
    import struct
    return struct.unpack("<I", struct.pack("<f", x))[0]

def gen(R=4, D=2, kvpol="nt", stamp=False, dbg=False, prio=True, wpol=""):
    A = Asm()
    sB, sH, sW = "s30", "s31", "s32"
    A(f"""
    s_cmp_ge_u32 s2, 256
    s_cbranch_scc1 L_end
    s_load_dwordx16 s[4:19], s[0:1], 0
    s_load_dwordx8 s[20:27], s[0:1], 64
    s_load_dwordx2 s[28:29], s[0:1], 96
    """)
    def stampat(i):
        if stamp:
            A(f"s_memrealtime s[{70+2*i}:{71+2*i}]")
    def stamp_flush():
        if stamp:
            A(f"""
            s_waitcnt lgkmcnt(0)
            s_mov_b64 exec, 1
            s_add_u32 s92, s28, 0x400000
            s_addc_u32 s93, s29, 0
            s_mov_b32 s94, 0x100000
            s_mov_b32 s95, 0x20000
            s_lshl_b32 s96, s2, 3
            s_add_u32 s96, s96, s32
            s_lshl_b32 s96, s96, 6
            v_mov_b32 v250, s96
            """)
            for i in range(8):
                A(f"v_mov_b32 v252, s{70+2*i}")
                A(f"v_mov_b32 v253, s{71+2*i}")
                A(f"buffer_store_dwordx2 v[252:253], v250, s[92:95], 0 offen offset:{8*i}")
                A("s_nop 1")
            A("s_waitcnt vmcnt(0)")
    if stamp:
        for i in range(16):
            A(f"s_mov_b32 s{70+i}, 0")
    stampat(0)
    A(f"""
    v_lshrrev_b32 v1, 6, v0
    v_and_b32 v0, 63, v0
    v_readfirstlane_b32 {sW}, v1
    s_lshr_b32 {sB}, s2, 5
    s_and_b32 {sH}, s2, 31
    v_and_b32 v1, 15, v0
    v_lshrrev_b32 v2, 4, v0
    s_cmp_ge_u32 {sW}, 4
    s_cbranch_scc1 L_helper
    """)
    vOFF, vSCW, vSCR, vPRD, vT = "v3", "v4", "v5", "v6", "v7"
    Q = 8
    MSK = 12
    S = 16
    T01, T23, U, U2 = "v20", "v21", "v22", "v23"
    ACC = 24
    P = [28, 32]
    B = [36, 40]
    SS = 44
    vM, vL = "v60", "v61"
    RING = 64
    assert RING + 16 * R <= 256
    sK, sV = "s44", "s45"
    SRDK, SRDV = 36, 40
    if prio:
        A("s_setprio 2")
    A(f"""
    v_lshlrev_b32 {vOFF}, 4, v0
    s_lshl_b32 s33, s2, 20
    s_lshl_b32 {sK}, {sW}, 12
    s_mov_b32 {sV}, {sK}
    s_waitcnt lgkmcnt(0)
    s_add_u32 s36, s6, s33
    s_addc_u32 s37, s7, 0
    s_mov_b32 s38, 0x100000
    s_mov_b32 s39, 0x20000
    s_add_u32 s40, s8, s33
    s_addc_u32 s41, s9, 0
    s_mov_b32 s42, 0x100000
    s_mov_b32 s43, 0x20000
    """)
    def issue(n):
        slot = n % R
        r = RING + 16 * slot
        srd, so = (SRDK, sK) if n < 64 else (SRDV, sV)
        for j in range(4):
            A(f"buffer_load_dwordx4 v[{r+4*j}:{r+4*j+3}], {vOFF}, s[{srd}:{srd+3}], {so} offen offset:{1024*j} {kvpol}")
        A(f"s_add_u32 {so}, {so}, 16384")
    for n in range(R):
        issue(n)
    def build_masks(base, tmp0, tmp1):
        A(f"""
        v_and_b32 {tmp0}, 1, v1
        v_mov_b32 {tmp1}, 0xffff
        v_cmp_eq_u32 vcc, 1, {tmp0}
        v_mov_b32 {tmp0}, 0xffff0000
        s_nop 0
        v_cndmask_b32 {tmp0}, {tmp1}, {tmp0}, vcc
        v_lshrrev_b32 {tmp1}, 1, v1
        """)
        for r in range(4):
            A(f"""
            v_cmp_eq_u32 vcc, {r}, {tmp1}
            s_nop 1
            v_cndmask_b32 v{base+r}, 0, {tmp0}, vcc
            """)
    build_masks(MSK, "v44", "v45")
    A(f"""
    v_bfe_u32 v44, v0, 2, 1
    v_bfe_u32 v45, v0, 3, 1
    v_lshl_or_b32 v44, v44, 1, v45
    v_lshlrev_b32 v44, 2, v44
    v_lshl_or_b32 v44, v2, 4, v44
    s_lshl_b32 s46, {sW}, 12
    v_add_u32 {vSCW}, s46, v44
    v_lshlrev_b32 v45, 4, v0
    v_add_u32 {vSCR}, s46, v45
    v_lshlrev_b32 v45, 4, v2
    v_add_u32 {vPRD}, s46, v45
    v_lshlrev_b32 {vT}, 5, v1
    """)
    stampat(1)
    A("s_barrier")
    stampat(2)
    for w in range(4):
        A(f"ds_read_b128 v[{SS+0+8*(w%2)}:{SS+3+8*(w%2)}], {vT} offset:{QP+w*512}")
        A(f"ds_read_b128 v[{SS+4+8*(w%2)}:{SS+7+8*(w%2)}], {vT} offset:{QP+w*512+16}")
        if w == 1:
            A("s_waitcnt lgkmcnt(0)")
            for i in range(8):
                A(f"v_add_f32 v{16+i}, v{SS+i}, v{SS+8+i}")
    A("s_waitcnt lgkmcnt(0)")
    for i in range(8):
        A(f"v_add_f32 v{SS+i}, v{SS+i}, v{SS+8+i}")
    for i in range(8):
        A(f"v_add_f32 v{SS+i}, v{SS+i}, v{16+i}")
    for r in range(4):
        A(f"v_cvt_pk_bf16_f32 v{Q+r}, v{SS+2*r}, v{SS+2*r+1}")
    if dbg:
        A(f"""
        s_cmp_eq_u32 {sW}, 0
        s_cbranch_scc0 L_nodq
        s_add_u32 s48, s28, 0x100000
        s_addc_u32 s49, s29, 0
        s_mov_b32 s50, 0x100000
        s_mov_b32 s51, 0x20000
        s_lshl_b32 s46, s2, 8
        v_lshlrev_b32 v44, 4, v1
        v_add_u32 v44, s46, v44
        buffer_store_dwordx4 v[{Q}:{Q+3}], v44, s[48:51], 0 offen
        s_waitcnt vmcnt(0)
        """)
        A.label("L_nodq")
    A("s_nop 1")

    def wait_vm(n_younger_tiles):
        A(f"s_waitcnt vmcnt({4*n_younger_tiles})")

    def kstep(n, slot, younger, issue_n, ldsoff):
        r = RING + 16 * slot
        wait_vm(younger)
        for rr in range(4):
            for j in range(4):
                c = "0" if rr == 0 else f"v{S+j}"
                A(f"v_dot2_f32_bf16 v{S+j}, v{r+4*j+rr}, v{Q+rr}, {c}")
        if issue_n is not None:
            issue(issue_n)
        else:
            A("s_nop 3")
        A(f"""
        v_add_f32_dpp {T01}, v{S+0}, v{S+0} row_ror:8 row_mask:0xf bank_mask:0x3
        v_add_f32_dpp {T01}, v{S+1}, v{S+1} row_ror:8 row_mask:0xf bank_mask:0xc
        v_add_f32_dpp {T23}, v{S+2}, v{S+2} row_ror:8 row_mask:0xf bank_mask:0x3
        v_add_f32_dpp {T23}, v{S+3}, v{S+3} row_ror:8 row_mask:0xf bank_mask:0xc
        s_nop 0
        v_add_f32_dpp {U}, {T01}, {T01} row_half_mirror row_mask:0xf bank_mask:0x5
        v_add_f32_dpp {U}, {T23}, {T23} row_half_mirror row_mask:0xf bank_mask:0xa
        s_nop 1
        v_add_f32_dpp {U2}, {U}, {U} quad_perm:[1,0,3,2] row_mask:0xf bank_mask:0xf
        s_nop 1
        v_add_f32_dpp {U}, {U2}, {U2} quad_perm:[2,3,0,1] row_mask:0xf bank_mask:0xf
        ds_write_b32 {vSCW}, {U} offset:{ldsoff}
        """)

    def younger_at(n):
        last = max(R - 1, n - 1 + D)
        last = min(last, 127)
        return last - n
    def issue_at(n):
        t = n + D
        if t < R or t > 127:
            return None
        return t
    for n in range(R):
        kstep(n, n % R, younger_at(n), issue_at(n), n * 64)
    kK = (64 - R - D) // R
    n0 = R
    if kK > 0:
        A(f"s_mov_b32 s47, {kK}")
        A(f"v_add_u32 {vSCW}, {n0*64}, {vSCW}")
        A.label("L_kloop")
        for i in range(R):
            n = n0 + i
            kstep(n, n % R, younger_at(n), issue_at(n), i * 64)
        A(f"""
        v_add_u32 {vSCW}, {R*64}, {vSCW}
        s_sub_u32 s47, s47, 1
        s_cmp_lg_u32 s47, 0
        s_cbranch_scc1 L_kloop
        """)
        n1 = n0 + kK * R
        base_off = n1
    else:
        n1 = n0
        base_off = 0
    for n in range(n1, 64):
        kstep(n, n % R, younger_at(n), issue_at(n), (n - base_off) * 64)

    stampat(3)
    for i in range(4):
        A(f"ds_read_b128 v[{SS+4*i}:{SS+4*i+3}], {vSCR} offset:{1024*i}")
    A("s_waitcnt lgkmcnt(0)")
    A(f"v_max3_f32 {vM}, v{SS}, v{SS+1}, v{SS+2}")
    for i in range(3, 15, 2):
        A(f"v_max3_f32 {vM}, {vM}, v{SS+i}, v{SS+i+1}")
    A(f"v_max_f32 {vM}, {vM}, v{SS+15}")
    def allreduce(op, v, tmp):
        for rot in (8, 4, 2, 1):
            A("s_nop 1")
            A(f"{op}_dpp {v}, {v}, {v} row_ror:{rot} row_mask:0xf bank_mask:0xf")
        A(f"v_mov_b32 {tmp}, {v}")
        A("s_nop 1")
        A(f"v_permlane16_swap_b32 {tmp}, {v}")
        A("s_nop 1")
        A(f"{op} {v}, {v}, {tmp}")
        A(f"v_mov_b32 {tmp}, {v}")
        A("s_nop 1")
        A(f"v_permlane32_swap_b32 {tmp}, {v}")
        A("s_nop 1")
        A(f"{op} {v}, {v}, {tmp}")
    allreduce("v_max_f32", vM, "v62")
    A(f"s_mov_b32 s46, {hex(f2u(C_SCALE))}")
    A(f"v_mul_f32 v62, s46, {vM}")
    for i in range(16):
        A(f"v_fma_f32 v{SS+i}, v{SS+i}, s46, -v62")
    for i in range(16):
        A(f"v_exp_f32 v{SS+i}, v{SS+i}")
    A("s_nop 0")
    A(f"v_add_f32 {vL}, v{SS}, v{SS+1}")
    for i in range(2, 16):
        A(f"v_add_f32 {vL}, {vL}, v{SS+i}")
    for i in range(16):
        A(f"v_cvt_pk_bf16_f32 v{SS+i}, v{SS+i}, v{SS+i}")
    for i in range(4):
        A(f"ds_write_b128 {vSCR}, v[{SS+4*i}:{SS+4*i+3}] offset:{1024*i}")
    A(f"ds_read_b128 v[{P[0]}:{P[0]+3}], {vPRD} offset:0")
    allreduce("v_add_f32", vL, "v62")

    def vstep(n, first, younger, issue_n, pin, pnext_off):
        slot = n % R
        r = RING + 16 * slot
        Pc = P[pin]; Pn = P[pin ^ 1]
        A(f"s_waitcnt vmcnt({4*younger}) lgkmcnt(0)")
        if pnext_off is not None:
            A(f"ds_read_b128 v[{Pn}:{Pn+3}], {vPRD} offset:{pnext_off}")
        def bld(j):
            for rr in range(4):
                A(f"v_and_b32 v{B[j&1]+rr}, v{Pc+j}, v{MSK+rr}")
        def mf(j):
            c = "0" if (first and j == 0) else f"v[{ACC}:{ACC+3}]"
            A(f"v_mfma_f32_16x16x32_bf16 v[{ACC}:{ACC+3}], v[{r+4*j}:{r+4*j+3}], v[{B[j&1]}:{B[j&1]+3}], {c}")
        bld(0); bld(1); mf(0); bld(2); mf(1); bld(3); mf(2); A("s_nop 0"); mf(3)
        if issue_n is not None:
            issue(issue_n)
    kV = (64 - D) // R
    RV = R if R % 2 == 0 else 2 * R
    kV = (64 - D - 1) // RV
    for i in range(4):
        A(f"v_mov_b32 v{ACC+i}, 0")
    nv0 = 64
    if kV > 0:
        A(f"s_mov_b32 s47, {kV}")
        A.label("L_vloop")
        for i in range(RV):
            n = nv0 + i
            vstep(n, False, younger_at(n), issue_at(n), i & 1, (i + 1) * 64)
        A(f"""
        v_add_u32 {vPRD}, {RV*64}, {vPRD}
        s_sub_u32 s47, s47, 1
        s_cmp_lg_u32 s47, 0
        s_cbranch_scc1 L_vloop
        """)
        nv1 = nv0 + kV * RV
    else:
        nv1 = nv0
    for n in range(nv1, 128):
        vstep(n, False, younger_at(n), issue_at(n), (n - 64) & 1, ((n - nv1 + 1) * 64) if n < 127 else None)
    stampat(4)
    A(f"""
    v_lshlrev_b32 v44, 7, v2
    v_lshl_or_b32 v44, v1, 2, v44
    s_lshl_b32 s46, {sW}, 9
    v_add_u32 v44, s46, v44
    s_lshl_b32 s46, {sW}, 3
    v_mov_b32 v45, s46
    s_nop 7
    s_mov_b32 exec_lo, 0x00ff00ff
    s_mov_b32 exec_hi, 0x00ff00ff
    """)
    for r in range(4):
        A(f"ds_write_b32 v44, v{ACC+r} offset:{OP + 32*r}")
    A(f"""
    s_mov_b64 exec, 1
    ds_write_b64 v45, v[60:61] offset:{ML}
    s_mov_b64 exec, -1
    s_waitcnt lgkmcnt(0)
    s_barrier
    s_branch L_join
    """)

    A.label("L_helper")
    X = 8
    SEL = 28
    HM = 36
    HB = [40, 44]
    HACC = 48
    W = 80
    vA, vB_, vC = "v3", "v4", "v5"
    sWH = "s33"
    SX, SW1, SW2, SZ = 36, 40, 44, 48
    A(f"""
    s_sub_u32 {sWH}, {sW}, 4
    s_mul_i32 s52, {sB}, 1280
    s_mul_i32 s53, {sWH}, 320
    v_mul_u32_u24 v3, 80, v2
    v_add_u32 v3, s53, v3
    v_lshlrev_b32 v6, 5, v0
    s_mul_i32 s53, {sWH}, {160*8192}
    v_mul_u32_u24 v4, 40, v2
    v_lshlrev_b32 v4, 13, v4
    v_lshl_or_b32 v4, v1, 4, v4
    v_add_u32 v4, s53, v4
    s_lshl_b32 s54, {sH}, 8
    s_waitcnt lgkmcnt(0)
    s_add_u32 s36, s4, s52
    s_addc_u32 s37, s5, 0
    s_mov_b32 s38, 1280
    s_mov_b32 s39, 0x20000
    s_add_u32 s40, s10, s54
    s_addc_u32 s41, s11, 0
    s_sub_u32 s42, {640*8192}, s54
    s_mov_b32 s43, 0x20000
    s_mov_b32 s48, s22
    s_mov_b32 s49, s23
    s_mov_b32 s50, 1280
    s_mov_b32 s51, 0x20000
    """)
    for i in range(5):
        A(f"buffer_load_dwordx4 v[{X+4*i}:{X+4*i+3}], v3, s[36:39], 0 offen offset:{16*i}")
    A("s_mov_b32 s55, 0")
    for j in range(40):
        A(f"buffer_load_dwordx4 v[{W+4*j}:{W+4*j+3}], v4, s[40:43], s55 offen {wpol}")
        if j < 39:
            A("s_add_u32 s55, s55, 8192")
    A(f"""
    buffer_load_dwordx4 v[68:71], v6, s[36:39], 0 offen
    buffer_load_dwordx4 v[72:75], v6, s[36:39], 0 offen offset:16
    buffer_load_dwordx4 v[240:243], v6, s[48:51], 0 offen
    buffer_load_dwordx4 v[244:247], v6, s[48:51], 0 offen offset:16
    """)
    NEXTRA = 4
    build_masks(HM, "v5", "v7")
    A(f"""
    v_and_b32 v5, 1, v1
    v_cmp_eq_u32 vcc, 1, v5
    v_mov_b32 v5, 0x0c0c0100
    v_mov_b32 v7, 0x01000c0c
    v_cndmask_b32 v76, v5, v7, vcc
    v_mov_b32 v5, 0x0c0c0302
    v_mov_b32 v7, 0x03020c0c
    v_cndmask_b32 v77, v5, v7, vcc
    v_lshrrev_b32 v5, 1, v1
    v_mov_b32 v7, 0x0c0c0c0c
    """)
    for r in range(4):
        A(f"""
        v_cmp_eq_u32 vcc, {r}, v5
        s_nop 1
        v_cndmask_b32 v{SEL+r}, v7, v76, vcc
        v_cndmask_b32 v{SEL+4+r}, v7, v77, vcc
        """)
    A(f"""
    v_mov_b32 v5, 0
    v_mov_b32 v7, {CNT}
    s_cmp_eq_u32 {sWH}, 0
    s_cbranch_scc0 L_nocnt
    s_mov_b64 exec, 1
    ds_write_b32 v7, v5
    s_mov_b64 exec, -1
    """)
    A.label("L_nocnt")
    def bperm(j, dst):
        xr = X + (j >> 1)
        so = SEL + 4 * (j & 1)
        for r in range(4):
            A(f"v_perm_b32 v{dst+r}, v{xr}, v{xr}, v{so+r}")
    def gemv40(acc, waitfn):
        waitfn(-1)
        bperm(0, HB[0])
        for j in range(40):
            if j + 1 < 40:
                bperm(j + 1, HB[(j + 1) & 1])
            else:
                A("s_nop 1")
            waitfn(j)
            c = "0" if j == 0 else f"v[{acc}:{acc+3}]"
            A(f"v_mfma_f32_16x16x32_bf16 v[{acc}:{acc+3}], v[{W+4*j}:{W+4*j+3}], v[{HB[j&1]}:{HB[j&1]+3}], {c}")
    def wq_wait(j):
        if j < 0:
            A(f"s_waitcnt vmcnt({40+NEXTRA})")
        else:
            A(f"s_waitcnt vmcnt({39-j+NEXTRA})")
    gemv40(HACC, wq_wait)
    A(f"""
    v_lshlrev_b32 v5, 7, v2
    v_lshl_or_b32 v5, v1, 2, v5
    s_lshl_b32 s55, {sWH}, 9
    v_add_u32 v5, s55, v5
    s_nop 7
    s_mov_b32 exec_lo, 0x00ff00ff
    s_mov_b32 exec_hi, 0x00ff00ff
    """)
    for r in range(4):
        A(f"ds_write_b32 v5, v{HACC+r} offset:{QP + 32*r}")
    A("""
    s_mov_b64 exec, -1
    s_waitcnt lgkmcnt(0)
    """)
    stampat(1)
    A("""
    s_barrier
    s_setprio 0
    """)
    A("s_waitcnt vmcnt(0)")
    A("v_dot2_f32_bf16 v6, v68, v240, 0")
    for i in range(1, 4):
        A(f"v_dot2_f32_bf16 v6, v{68+i}, v{240+i}, v6")
    for i in range(4):
        A(f"v_dot2_f32_bf16 v6, v{72+i}, v{244+i}, v6")
    A("s_nop 2")
    allreduce("v_add_f32", "v6", "v7")
    A(f"""
    v_mul_f32 v6, {hex(f2u(-math.log2(math.e)))}, v6
    v_exp_f32 v6, v6
    s_nop 0
    v_add_f32 v6, 1.0, v6
    v_rcp_f32 v78, v6
    s_nop 0
    v_sub_f32 v79, 1.0, v78
    """)
    vG, vG1 = "v78", "v79"
    A(f"""
    s_cmp_ge_u32 {sH}, 27
    s_cbranch_scc1 L_noffn
    s_lshl_b32 s54, {sH}, 7
    s_add_u32 s40, s16, s54
    s_addc_u32 s41, s17, 0
    s_sub_u32 s42, {640*3456}, s54
    s_add_u32 s44, s18, s54
    s_addc_u32 s45, s19, 0
    s_mov_b32 s46, s42
    s_mov_b32 s47, 0x20000
    s_mul_i32 s53, {sWH}, {160*3456}
    v_mul_u32_u24 v4, {40*3456}, v2
    v_and_b32 v6, 7, v1
    v_lshl_add_u32 v4, v6, 4, v4
    v_add_u32 v4, s53, v4
    """)
    def ffn_issue(j0, j1):
        A("s_mov_b32 exec_lo, 0x00ff00ff")
        A("s_mov_b32 exec_hi, 0x00ff00ff")
        A(f"s_mov_b32 s55, {j0*3456}")
        for j in range(j0, j1):
            A(f"buffer_load_dwordx4 v[{W+4*j}:{W+4*j+3}], v4, s[40:43], s55 offen {wpol}")
            A("s_add_u32 s55, s55, 3456")
        A("s_mov_b32 exec_lo, 0xff00ff00")
        A("s_mov_b32 exec_hi, 0xff00ff00")
        A(f"s_mov_b32 s55, {j0*3456}")
        for j in range(j0, j1):
            A(f"buffer_load_dwordx4 v[{W+4*j}:{W+4*j+3}], v4, s[44:47], s55 offen {wpol}")
            A("s_add_u32 s55, s55, 3456")
        A("s_mov_b64 exec, -1")
    ffn_issue(0, 20)
    A("s_waitcnt vmcnt(0)")
    ffn_issue(20, 40)
    def ffn_wait(j):
        if j == 20:
            A("s_waitcnt vmcnt(0)")
    gemv40(HACC, ffn_wait)
    A(f"""
    s_mul_i32 s54, {sH}, {64*1280}
    s_add_u32 s40, s20, s54
    s_addc_u32 s41, s21, 0
    s_mov_b32 s42, {64*1280}
    s_mul_i32 s53, {sWH}, {16*1280}
    v_mul_u32_u24 v4, {4*1280}, v2
    v_lshl_add_u32 v4, v1, 4, v4
    v_add_u32 v4, s53, v4
    """)
    for m in range(4):
        A(f"s_mov_b32 s55, {m*1280}")
        for c in range(5):
            k = m * 5 + c
            A(f"buffer_load_dwordx4 v[{W+4*k}:{W+4*k+3}], v4, s[40:43], s55 offen offset:{256*c} {wpol}")
    A("s_mov_b32 exec_lo, 0x00ff00ff")
    A("s_mov_b32 exec_hi, 0x00ff00ff")
    for r in range(4):
        A(f"ds_write_b32 v5, v{HACC+r} offset:{FP + 32*r}")
    A(f"""
    s_waitcnt lgkmcnt(0)
    s_mov_b64 exec, -1
    v_mov_b32 v6, 1
    v_mov_b32 v7, {CNT}
    s_mov_b64 exec, 1
    ds_add_u32 v7, v6
    s_mov_b64 exec, -1
    """)
    A.label("L_spin")
    A(f"""
    ds_read_b32 v6, v7
    s_waitcnt lgkmcnt(0)
    v_readfirstlane_b32 s55, v6
    s_nop 3
    s_cmp_ge_u32 s55, 4
    s_cbranch_scc1 L_spun
    s_sleep 2
    s_branch L_spin
    """)
    A.label("L_spun")
    A(f"""
    s_lshl_b32 s55, {sWH}, 6
    v_lshlrev_b32 v6, 4, v2
    v_add_u32 v6, s55, v6
    """)
    A(f"ds_read_b128 v[8:11], v6 offset:{FP}")
    A(f"ds_read_b128 v[12:15], v6 offset:{FP+256}")
    for w in range(1, 4):
        A(f"ds_read_b128 v[16:19], v6 offset:{FP+512*w}")
        A(f"ds_read_b128 v[20:23], v6 offset:{FP+512*w+256}")
        A("s_waitcnt lgkmcnt(0)")
        for i in range(8):
            A(f"v_add_f32 v{8+i}, v{8+i}, v{16+i}")
    for m in range(4):
        A(f"v_max_f32 v{8+m}, 0, v{8+m}")
    for m in range(4):
        A(f"v_mul_f32 v{8+m}, v{8+m}, v{12+m}")
    for m in range(4):
        A(f"v_cvt_pk_bf16_f32 v{8+m}, v{8+m}, v{8+m}")
    A("s_waitcnt vmcnt(0)")
    for m in range(4):
        hb = HB[m & 1]
        for r in range(4):
            A(f"v_and_b32 v{hb+r}, v{8+m}, v{HM+r}")
        A("s_nop 1")
        for c in range(5):
            k = m * 5 + c
            cc = "0" if m == 0 else f"v[{HACC+4*c}:{HACC+4*c+3}]"
            A(f"v_mfma_f32_16x16x32_bf16 v[{HACC+4*c}:{HACC+4*c+3}], v[{W+4*k}:{W+4*k+3}], v[{hb}:{hb+3}], {cc}")
    A("s_nop 7")
    A("s_nop 1")
    for i in range(20):
        A(f"v_mul_f32 v{HACC+i}, {vG1}, v{HACC+i}")
    A("s_branch L_ffndone")
    A.label("L_noffn")
    for i in range(20):
        A(f"v_mov_b32 v{HACC+i}, 0")
    A.label("L_ffndone")
    stampat(2)
    A(f"""
    s_mul_i32 s54, {sH}, {128*1280}
    s_add_u32 s40, s12, s54
    s_addc_u32 s41, s13, 0
    s_mov_b32 s42, {128*1280}
    s_mov_b32 s43, 0x20000
    s_mul_i32 s53, {sWH}, {32*1280}
    v_mul_u32_u24 v4, {8*1280}, v2
    v_lshl_add_u32 v4, v1, 4, v4
    v_add_u32 v4, s53, v4
    """)
    for m in range(8):
        A(f"s_mov_b32 s55, {m*1280}")
        for c in range(5):
            k = m * 5 + c
            A(f"buffer_load_dwordx4 v[{W+4*k}:{W+4*k+3}], v4, s[40:43], s55 offen offset:{256*c} {wpol}")
    A(f"""
    s_lshl_b32 s55, {sWH}, 7
    v_lshlrev_b32 v6, 5, v2
    v_add_u32 v6, s55, v6
    v_mov_b32 v7, 0
    s_mul_i32 s55, {sWH}, 2560
    v_lshlrev_b32 v5, 7, v2
    v_lshl_or_b32 v5, v1, 2, v5
    v_add_u32 v5, s55, v5
    s_waitcnt vmcnt(0)
    s_setprio 2
    """)
    stampat(3)
    A("s_barrier")
    stampat(4)
    A(f"ds_read_b128 v[8:11], v7 offset:{ML}")
    A(f"ds_read_b128 v[12:15], v7 offset:{ML+16}")
    OB = 240
    A(f"ds_read_b128 v[16:19], v6 offset:{OP}")
    A(f"ds_read_b128 v[20:23], v6 offset:{OP+16}")
    A(f"ds_read_b128 v[240:243], v6 offset:{OP+512}")
    A(f"ds_read_b128 v[244:247], v6 offset:{OP+512+16}")
    A(f"ds_read_b128 v[248:251], v6 offset:{OP+1024}")
    A(f"ds_read_b128 v[252:255], v6 offset:{OP+1024+16}")
    A(f"ds_read_b128 v[28:31], v6 offset:{OP+1536}")
    A(f"ds_read_b128 v[32:35], v6 offset:{OP+1536+16}")
    A("s_waitcnt lgkmcnt(8)")
    A(f"""
    v_max3_f32 v24, v8, v10, v12
    v_max_f32 v24, v24, v14
    s_mov_b32 s55, {hex(f2u(C_SCALE))}
    v_sub_f32 v8, v8, v24
    v_sub_f32 v10, v10, v24
    v_sub_f32 v12, v12, v24
    v_sub_f32 v14, v14, v24
    v_mul_f32 v8, s55, v8
    v_mul_f32 v10, s55, v10
    v_mul_f32 v12, s55, v12
    v_mul_f32 v14, s55, v14
    v_exp_f32 v8, v8
    v_exp_f32 v10, v10
    v_exp_f32 v12, v12
    v_exp_f32 v14, v14
    s_nop 0
    v_mul_f32 v25, v8, v9
    v_fmac_f32 v25, v10, v11
    v_fmac_f32 v25, v12, v13
    v_fmac_f32 v25, v14, v15
    v_rcp_f32 v25, v25
    s_nop 0
    v_mul_f32 v25, v25, {vG}
    v_mul_f32 v8, v8, v25
    v_mul_f32 v10, v10, v25
    v_mul_f32 v12, v12, v25
    v_mul_f32 v14, v14, v25
    s_waitcnt lgkmcnt(0)
    """)
    for i in range(8):
        A(f"v_mul_f32 v{68+i}, v8, v{16+i}")
    for i in range(8):
        A(f"v_fmac_f32 v{68+i}, v10, v{240+i}")
    for i in range(8):
        A(f"v_fmac_f32 v{68+i}, v12, v{248+i}")
    for i in range(8):
        A(f"v_fmac_f32 v{68+i}, v14, v{28+i}")
    if dbg:
        A(f"""
        s_add_u32 s48, s28, 0x200000
        s_addc_u32 s49, s29, 0
        s_mov_b32 s50, 0x100000
        s_mov_b32 s51, 0x20000
        s_lshl_b32 s55, s2, 9
        v_add_u32 v26, s55, v6
        buffer_store_dwordx4 v[68:71], v26, s[48:51], 0 offen
        buffer_store_dwordx4 v[72:75], v26, s[48:51], 0 offen offset:16
        s_waitcnt vmcnt(0)
        """)
    for i in range(8):
        A(f"v_cvt_pk_bf16_f32 v{68+i}, v{68+i}, v{68+i}")
    for m in range(8):
        hb = HB[m & 1]
        for r in range(4):
            A(f"v_and_b32 v{hb+r}, v{68+m}, v{HM+r}")
        A("s_nop 1")
        for c in range(5):
            k = m * 5 + c
            A(f"v_mfma_f32_16x16x32_bf16 v[{HACC+4*c}:{HACC+4*c+3}], v[{W+4*k}:{W+4*k+3}], v[{hb}:{hb+3}], v[{HACC+4*c}:{HACC+4*c+3}]")
    A("""
    s_nop 7
    s_mov_b32 exec_lo, 0x00ff00ff
    s_mov_b32 exec_hi, 0x00ff00ff
    """)
    for c in range(5):
        for r in range(4):
            A(f"ds_write_b32 v5, v{HACC+4*c+r} offset:{YP + 512*c + 32*r}")
    A("""
    s_mov_b64 exec, -1
    s_waitcnt lgkmcnt(0)
    """)
    A.label("L_join")
    A("s_barrier")
    stampat(5)
    A(f"""
    s_cmp_ge_u32 {sW}, 5
    s_cbranch_scc1 L_exit
    s_lshl_b32 s52, {sW}, 9
    v_lshlrev_b32 v3, 4, v0
    v_add_u32 v3, s52, v3
    s_mov_b32 exec_hi, 0
    ds_read_b128 v[8:11], v3 offset:{YP}
    ds_read_b128 v[12:15], v3 offset:{YP+2560}
    ds_read_b128 v[16:19], v3 offset:{YP+5120}
    ds_read_b128 v[20:23], v3 offset:{YP+7680}
    s_mul_i32 s53, {sB}, {32*2560}
    s_add_u32 s36, s28, s53
    s_addc_u32 s37, s29, 0
    s_mov_b32 s38, {32*2560}
    s_mov_b32 s39, 0x20000
    s_mul_i32 s53, {sH}, 2560
    s_add_u32 s53, s53, s52
    v_lshlrev_b32 v4, 4, v0
    s_waitcnt lgkmcnt(0)
    """)
    for i in range(4):
        A(f"v_add_f32 v{8+i}, v{8+i}, v{12+i}")
        A(f"v_add_f32 v{16+i}, v{16+i}, v{20+i}")
    for i in range(4):
        A(f"v_add_f32 v{8+i}, v{8+i}, v{16+i}")
    A(f"""
    buffer_store_dwordx4 v[8:11], v4, s[36:39], s53 offen sc1
    s_mul_i32 s54, {sB}, 5
    s_add_u32 s54, s54, {sW}
    s_lshl_b32 s54, s54, 2
    s_mov_b32 s40, s26
    s_mov_b32 s41, s27
    s_mov_b32 s42, 256
    s_mov_b32 s43, 0x20000
    v_mov_b32 v5, s54
    v_mov_b32 v6, 1
    s_waitcnt vmcnt(0)
    s_mov_b64 exec, 1
    buffer_atomic_add v6, v5, s[40:43], 0 offen sc0
    s_waitcnt vmcnt(0)
    v_readfirstlane_b32 s55, v6
    s_mov_b64 exec, -1
    s_nop 3
    s_cmp_eq_u32 s55, 31
    """)
    stampat(6)
    A(f"""
    s_cbranch_scc0 L_exit
    v_lshrrev_b32 v5, 5, v0
    v_mul_u32_u24 v5, 2560, v5
    v_and_b32 v6, 31, v0
    v_lshl_add_u32 v5, v6, 4, v5
    s_mov_b32 s53, s52
    """)
    for i in range(16):
        A(f"buffer_load_dwordx4 v[{8+4*i}:{8+4*i+3}], v5, s[36:39], s53 offen sc1")
        if i < 15:
            A("s_add_u32 s53, s53, 5120")
    for i in range(1, 16):
        A(f"s_waitcnt vmcnt({15-i})")
        for k in range(4):
            A(f"v_add_f32 v{8+k}, v{8+k}, v{8+4*i+k}")
    for k in range(4):
        A(f"v_mov_b32 v{12+k}, v{8+k}")
    A("s_nop 1")
    for k in range(4):
        A(f"v_permlane32_swap_b32 v{12+k}, v{8+k}")
    A("s_nop 1")
    for k in range(4):
        A(f"v_add_f32 v{8+k}, v{8+k}, v{12+k}")
    A(f"""
    v_cvt_pk_bf16_f32 v8, v8, v9
    v_cvt_pk_bf16_f32 v9, v10, v11
    s_mul_i32 s53, {sB}, 1280
    s_lshl_b32 s54, {sW}, 8
    s_add_u32 s53, s53, s54
    s_mov_b32 s44, s24
    s_mov_b32 s45, s25
    s_mov_b32 s46, 10240
    s_mov_b32 s47, 0x20000
    v_lshlrev_b32 v4, 3, v0
    s_mov_b32 exec_hi, 0
    buffer_store_dwordx2 v[8:9], v4, s[44:47], s53 offen
    """)
    if stamp:
        A("s_waitcnt vmcnt(0)")
    stampat(7)
    A.label("L_exit")
    stamp_flush()
    A.label("L_end")
    A("s_endpgm")
    return A.text()

HEADER = open("gated_mix__gqa_block_cached__glu_gated_reglu__decode.s.ref").read().split("; Override launch")[0]

def full(body, lds, vgpr=256, sgpr=102):
    return (HEADER + f"; @launch grid=(256,1,1) block=(512,1,1) lds={lds}\n"
        + '.amdgcn_target "amdgcn-amd-amdhsa--gfx950"\n.text\n'
        + f".globl {NAME}\n.p2align 8\n.type {NAME},@function\n{NAME}:\n" + body + "\n"
        + '.section .rodata,"a"\n.p2align 6\n'
        + f".amdhsa_kernel {NAME}\n  .amdhsa_next_free_vgpr {vgpr}\n  .amdhsa_next_free_sgpr {sgpr}\n  .amdhsa_accum_offset {vgpr}\n"
        + "  .amdhsa_group_segment_fixed_size 0\n  .amdhsa_kernarg_size 104\n  .amdhsa_user_sgpr_count 2\n"
        + "  .amdhsa_user_sgpr_kernarg_segment_ptr 1\n  .amdhsa_system_sgpr_workgroup_id_x 1\n.end_amdhsa_kernel\n")

if __name__ == "__main__":
    import argparse
    ap = argparse.ArgumentParser()
    ap.add_argument("-o", default="gated_mix__gqa_block_cached__glu_gated_reglu__decode.s")
    ap.add_argument("--R", type=int, default=4)
    ap.add_argument("--D", type=int, default=2)
    ap.add_argument("--pol", default="nt")
    ap.add_argument("--wpol", default="")
    ap.add_argument("--dbg", action="store_true")
    ap.add_argument("--stamp", action="store_true")
    a = ap.parse_args()
    open(a.o, "w").write(full(gen(R=a.R, D=a.D, kvpol=a.pol, dbg=a.dbg, stamp=a.stamp, wpol=a.wpol), LDS_BYTES))
    print("wrote", a.o, "lds", LDS_BYTES)
```

```python
import sys, math

NAME = "gated_mix__gqa_block_cached__glu_gated_reglu__decode_kernel"

class Asm:
    def __init__(self):
        self.L = []
    def __call__(self, s):
        for line in s.split("\n"):
            line = line.strip()
            if line:
                self.L.append(line)
    def label(self, s):
        self.L.append(s + ":")
    def text(self):
        return "\n".join(x if x.endswith(":") else "    " + x for x in self.L)

SC   = 0
QP   = 16384
FP   = QP + 2048
OP   = FP + 2048
ML   = OP + 2048
CNT  = ML + 64
YP   = CNT + 64
LDS_BYTES = YP + 4 * 2560

C_SCALE = math.log2(math.e) / math.sqrt(128.0)
def f2u(x):
    import struct
    return struct.unpack("<I", struct.pack("<f", x))[0]

def gen(R=4, D=2, kvpol="nt", stamp=False, dbg=False, prio=True, wpol="", remap=0, hb=4, pat=None, late=True, ffn54=False, stag=False, patv=None, vsw=64, trace=False):
    A = Asm()
    sB, sH, sW = "s30", "s31", "s32"
    A(f"""
    s_cmp_ge_u32 s2, 256
    s_cbranch_scc1 L_end
    s_load_dwordx16 s[4:19], s[0:1], 0
    s_load_dwordx8 s[20:27], s[0:1], 64
    s_load_dwordx2 s[28:29], s[0:1], 96
    """)
    def stampat(i):
        if stamp:
            A(f"s_memrealtime s[{70+2*i}:{71+2*i}]")
    def stamp_flush():
        if stamp:
            A(f"""
            s_waitcnt lgkmcnt(0)
            s_mov_b64 exec, 1
            s_add_u32 s92, s28, 0x400000
            s_addc_u32 s93, s29, 0
            s_mov_b32 s94, 0x100000
            s_mov_b32 s95, 0x20000
            s_lshl_b32 s96, s2, 3
            s_add_u32 s96, s96, s32
            s_lshl_b32 s96, s96, 6
            v_mov_b32 v250, s96
            """)
            for i in range(8):
                A(f"v_mov_b32 v252, s{70+2*i}")
                A(f"v_mov_b32 v253, s{71+2*i}")
                A(f"buffer_store_dwordx2 v[252:253], v250, s[92:95], 0 offen offset:{8*i}")
                A("s_nop 1")
            A("s_waitcnt vmcnt(0)")
    if stamp:
        for i in range(16):
            A(f"s_mov_b32 s{70+i}, 0")
    stampat(0)
    A(f"""
    v_lshrrev_b32 v1, 6, v0
    v_and_b32 v0, 63, v0
    v_readfirstlane_b32 {sW}, v1
    """)
    if remap == 0:
        A(f"s_lshr_b32 {sB}, s2, 5")
        A(f"s_and_b32 {sH}, s2, 31")
    elif remap == 1:
        A(f"s_lshr_b32 {sB}, s2, 5")
        A(f"s_and_b32 {sH}, s2, 7")
        A(f"s_lshl_b32 {sH}, {sH}, 2")
        A(f"s_bfe_u32 s33, s2, 0x20003")
        A(f"s_or_b32 {sH}, {sH}, s33")
    elif remap == 2:
        A(f"s_and_b32 {sB}, s2, 7")
        A(f"s_lshr_b32 {sH}, s2, 3")
    A(f"s_lshl_b32 s2, {sB}, 5")
    A(f"s_or_b32 s2, s2, {sH}")
    A(f"""
    v_and_b32 v1, 15, v0
    v_lshrrev_b32 v2, 4, v0
    s_cmp_ge_u32 {sW}, 4
    s_cbranch_scc1 L_helper
    """)
    vOFF, vSCW, vSCR, vPRD, vT = "v3", "v4", "v5", "v6", "v7"
    Q = 8
    MSK = 12
    S = 16
    T01, T23, U, U2 = "v20", "v21", "v22", "v23"
    ACC = 24
    P = [28, 32]
    B = [36, 40]
    SS = 44
    vM, vL = "v60", "v61"
    RING = 64
    assert RING + 16 * R <= 256
    sK, sV = "s44", "s45"
    SRDK, SRDV = 36, 40
    if prio:
        A("s_setprio 2")
    A(f"""
    v_lshlrev_b32 {vOFF}, 4, v0
    s_lshl_b32 s33, s2, 20
    s_lshl_b32 {sK}, {sW}, 12
    s_mov_b32 {sV}, {sK}
    s_waitcnt lgkmcnt(0)
    s_add_u32 s36, s6, s33
    s_addc_u32 s37, s7, 0
    s_mov_b32 s38, 0x100000
    s_mov_b32 s39, 0x20000
    s_add_u32 s40, s8, s33
    s_addc_u32 s41, s9, 0
    s_mov_b32 s42, 0x100000
    s_mov_b32 s43, 0x20000
    """)
    def issue(n):
        slot = n % R
        r = RING + 16 * slot
        srd, so = (SRDK, sK) if n < 64 else (SRDV, sV)
        for j in range(4):
            A(f"buffer_load_dwordx4 v[{r+4*j}:{r+4*j+3}], {vOFF}, s[{srd}:{srd+3}], {so} offen offset:{1024*j} {kvpol}")
        A(f"s_add_u32 {so}, {so}, 16384")
    for n in range(R):
        issue(n)
    def build_masks(base, tmp0, tmp1):
        A(f"""
        v_and_b32 {tmp0}, 1, v1
        v_mov_b32 {tmp1}, 0xffff
        v_cmp_eq_u32 vcc, 1, {tmp0}
        v_mov_b32 {tmp0}, 0xffff0000
        s_nop 0
        v_cndmask_b32 {tmp0}, {tmp1}, {tmp0}, vcc
        v_lshrrev_b32 {tmp1}, 1, v1
        """)
        for r in range(4):
            A(f"""
            v_cmp_eq_u32 vcc, {r}, {tmp1}
            s_nop 1
            v_cndmask_b32 v{base+r}, 0, {tmp0}, vcc
            """)
    build_masks(MSK, "v44", "v45")
    A(f"""
    v_bfe_u32 v44, v0, 2, 1
    v_bfe_u32 v45, v0, 3, 1
    v_lshl_or_b32 v44, v44, 1, v45
    v_lshlrev_b32 v44, 2, v44
    v_lshl_or_b32 v44, v2, 4, v44
    s_lshl_b32 s46, {sW}, 12
    v_add_u32 {vSCW}, s46, v44
    v_lshlrev_b32 v45, 4, v0
    v_add_u32 {vSCR}, s46, v45
    v_lshlrev_b32 v45, 4, v2
    v_add_u32 {vPRD}, s46, v45
    v_lshlrev_b32 {vT}, 5, v1
    """)
    stampat(1)
    A("s_barrier")
    stampat(2)
    for w in range(4):
        A(f"ds_read_b128 v[{SS+0+8*(w%2)}:{SS+3+8*(w%2)}], {vT} offset:{QP+w*512}")
        A(f"ds_read_b128 v[{SS+4+8*(w%2)}:{SS+7+8*(w%2)}], {vT} offset:{QP+w*512+16}")
        if w == 1:
            A("s_waitcnt lgkmcnt(0)")
            for i in range(8):
                A(f"v_add_f32 v{16+i}, v{SS+i}, v{SS+8+i}")
    A("s_waitcnt lgkmcnt(0)")
    for i in range(8):
        A(f"v_add_f32 v{SS+i}, v{SS+i}, v{SS+8+i}")
    for i in range(8):
        A(f"v_add_f32 v{SS+i}, v{SS+i}, v{16+i}")
    for r in range(4):
        A(f"v_cvt_pk_bf16_f32 v{Q+r}, v{SS+2*r}, v{SS+2*r+1}")
    if dbg:
        A(f"""
        s_cmp_eq_u32 {sW}, 0
        s_cbranch_scc0 L_nodq
        s_add_u32 s48, s28, 0x100000
        s_addc_u32 s49, s29, 0
        s_mov_b32 s50, 0x100000
        s_mov_b32 s51, 0x20000
        s_lshl_b32 s46, s2, 8
        v_lshlrev_b32 v44, 4, v1
        v_add_u32 v44, s46, v44
        buffer_store_dwordx4 v[{Q}:{Q+3}], v44, s[48:51], 0 offen
        s_waitcnt vmcnt(0)
        """)
        A.label("L_nodq")
    A("s_nop 1")

    def wait_vm(n_younger_tiles):
        A(f"s_waitcnt vmcnt({4*n_younger_tiles})")

    TR = LDS_BYTES
    def tracept():
        if trace:
            A("""
            s_memrealtime s[60:61]
            s_waitcnt lgkmcnt(0)
            v_mov_b32 v62, s60
            s_mov_b64 exec, 1
            ds_write_b32 v63, v62
            s_mov_b64 exec, -1
            v_add_u32 v63, 4, v63
            """)
    if trace:
        A(f"s_lshl_b32 s46, {sW}, 8")
        A(f"s_add_u32 s46, s46, {TR}")
        A("v_mov_b32 v63, s46")
    def kstep(n, slot, younger, issue_l, ldsoff):
        if n % 4 == 0: tracept()
        r = RING + 16 * slot
        wait_vm(younger)
        if not late:
            for t in issue_l: issue(t)
        for rr in range(4):
            for j in range(4):
                c = "0" if rr == 0 else f"v{S+j}"
                A(f"v_dot2_f32_bf16 v{S+j}, v{r+4*j+rr}, v{Q+rr}, {c}")
        if late and issue_l:
            for t in issue_l: issue(t)
        else:
            A("s_nop 3")
        A(f"""
        v_add_f32_dpp {T01}, v{S+0}, v{S+0} row_ror:8 row_mask:0xf bank_mask:0x3
        v_add_f32_dpp {T01}, v{S+1}, v{S+1} row_ror:8 row_mask:0xf bank_mask:0xc
        v_add_f32_dpp {T23}, v{S+2}, v{S+2} row_ror:8 row_mask:0xf bank_mask:0x3
        v_add_f32_dpp {T23}, v{S+3}, v{S+3} row_ror:8 row_mask:0xf bank_mask:0xc
        s_nop 0
        v_add_f32_dpp {U}, {T01}, {T01} row_half_mirror row_mask:0xf bank_mask:0x5
        v_add_f32_dpp {U}, {T23}, {T23} row_half_mirror row_mask:0xf bank_mask:0xa
        s_nop 1
        v_add_f32_dpp {U2}, {U}, {U} quad_perm:[1,0,3,2] row_mask:0xf bank_mask:0xf
        s_nop 1
        v_add_f32_dpp {U}, {U2}, {U2} quad_perm:[2,3,0,1] row_mask:0xf bank_mask:0xf
        ds_write_b32 {vSCW}, {U} offset:{ldsoff}
        """)

    PAT = pat if pat else [D]
    P_ = len(PAT)
    assert max(PAT) <= (R if late else R - 1)
    hi = [0] * 130
    issued = R - 1
    plan = []
    for n in range(128):
        younger = issued - n
        assert younger >= 0
        pp = PAT if (n < vsw or not patv) else patv
        tgt = min(127, max(issued, n + pp[n % len(pp)]))
        lst = list(range(issued + 1, tgt + 1))
        issued = tgt
        plan.append((younger, lst))
    if patv:
        P_ = P_ * len(patv) // math.gcd(P_, len(patv))
        assert max(patv) <= (R if late else R - 1)
    UN = R * P_ // math.gcd(R, P_)
    if UN % 2: UN *= 2
    def periodic_from(n0, n_end):
        it = 0
        ref = [(plan[n0+i][0], [t - (n0+i) for t in plan[n0+i][1]]) for i in range(UN)]
        kind = [[t < 64 for t in plan[n0+i][1]] for i in range(UN)]
        while n0 + (it + 1) * UN <= n_end:
            base = n0 + it * UN
            cur = [(plan[base+i][0], [t - (base+i) for t in plan[base+i][1]]) for i in range(UN)]
            k2 = [[t < 64 for t in plan[base+i][1]] for i in range(UN)]
            if cur != ref or k2 != kind: break
            it += 1
        return it
    best = (0, 0)
    for n0 in range(0, 2 * UN + 1):
        if n0 % R: continue
        it = periodic_from(n0, 64)
        if it * UN > best[0] * UN or best[0] == 0:
            if it > best[0]: best = (it, n0)
    kK, n0 = best
    if kK < 2: kK, n0 = 0, 0
    for n in range(0, n0 if kK else 0):
        kstep(n, n % R, plan[n][0], plan[n][1], n * 64)
    if kK:
        A(f"s_mov_b32 s47, {kK}")
        if n0: A(f"v_add_u32 {vSCW}, {n0*64}, {vSCW}")
        A.label("L_kloop")
        for i in range(UN):
            n = n0 + i
            kstep(n, n % R, plan[n][0], plan[n][1], i * 64)
        A(f"""
        v_add_u32 {vSCW}, {UN*64}, {vSCW}
        s_sub_u32 s47, s47, 1
        s_cmp_lg_u32 s47, 0
        s_cbranch_scc1 L_kloop
        """)
        n1 = n0 + kK * UN
        base_off = n1
    else:
        n1 = 0; base_off = 0
    for n in range(n1, 64):
        kstep(n, n % R, plan[n][0], plan[n][1], (n - base_off) * 64)

    stampat(3)
    for i in range(4):
        A(f"ds_read_b128 v[{SS+4*i}:{SS+4*i+3}], {vSCR} offset:{1024*i}")
    A("s_waitcnt lgkmcnt(0)")
    A(f"v_max3_f32 {vM}, v{SS}, v{SS+1}, v{SS+2}")
    for i in range(3, 15, 2):
        A(f"v_max3_f32 {vM}, {vM}, v{SS+i}, v{SS+i+1}")
    A(f"v_max_f32 {vM}, {vM}, v{SS+15}")
    def allreduce(op, v, tmp):
        for rot in (8, 4, 2, 1):
            A("s_nop 1")
            A(f"{op}_dpp {v}, {v}, {v} row_ror:{rot} row_mask:0xf bank_mask:0xf")
        A(f"v_mov_b32 {tmp}, {v}")
        A("s_nop 1")
        A(f"v_permlane16_swap_b32 {tmp}, {v}")
        A("s_nop 1")
        A(f"{op} {v}, {v}, {tmp}")
        A(f"v_mov_b32 {tmp}, {v}")
        A("s_nop 1")
        A(f"v_permlane32_swap_b32 {tmp}, {v}")
        A("s_nop 1")
        A(f"{op} {v}, {v}, {tmp}")
    allreduce("v_max_f32", vM, "v62")
    A(f"s_mov_b32 s46, {hex(f2u(C_SCALE))}")
    A(f"v_mul_f32 v62, s46, {vM}")
    for i in range(16):
        A(f"v_fma_f32 v{SS+i}, v{SS+i}, s46, -v62")
    for i in range(16):
        A(f"v_exp_f32 v{SS+i}, v{SS+i}")
    A("s_nop 0")
    A(f"v_add_f32 {vL}, v{SS}, v{SS+1}")
    for i in range(2, 16):
        A(f"v_add_f32 {vL}, {vL}, v{SS+i}")
    for i in range(16):
        A(f"v_cvt_pk_bf16_f32 v{SS+i}, v{SS+i}, v{SS+i}")
    for i in range(4):
        A(f"ds_write_b128 {vSCR}, v[{SS+4*i}:{SS+4*i+3}] offset:{1024*i}")
    A(f"ds_read_b128 v[{P[0]}:{P[0]+3}], {vPRD} offset:0")
    allreduce("v_add_f32", vL, "v62")

    def vstep(n, younger, issue_l, pin, pnext_off):
        if n % 4 == 0: tracept()
        slot = n % R
        r = RING + 16 * slot
        Pc = P[pin]; Pn = P[pin ^ 1]
        A(f"s_waitcnt vmcnt({4*younger}) lgkmcnt(0)")
        if not late:
            for t in issue_l: issue(t)
        if pnext_off is not None:
            A(f"ds_read_b128 v[{Pn}:{Pn+3}], {vPRD} offset:{pnext_off}")
        def bld(j):
            for rr in range(4):
                A(f"v_and_b32 v{B[j&1]+rr}, v{Pc+j}, v{MSK+rr}")
        def mf(j):
            A(f"v_mfma_f32_16x16x32_bf16 v[{ACC}:{ACC+3}], v[{r+4*j}:{r+4*j+3}], v[{B[j&1]}:{B[j&1]+3}], v[{ACC}:{ACC+3}]")
        bld(0); bld(1); mf(0); bld(2); mf(1); bld(3); mf(2); A("s_nop 0"); mf(3)
        if late:
            for t in issue_l: issue(t)
    for i in range(4):
        A(f"v_mov_b32 v{ACC+i}, 0")
    bestv = (0, 64)
    for nv0 in range(64, 64 + 2 * UN + 1, 2):
        it = periodic_from(nv0, 127)
        if it > bestv[0]: bestv = (it, nv0)
    kV, nv0 = bestv
    if kV < 2: kV, nv0 = 0, 64
    for n in range(64, nv0):
        vstep(n, plan[n][0], plan[n][1], (n - 64) & 1, (n - 64 + 1) * 64)
    if kV:
        A(f"s_mov_b32 s47, {kV}")
        if nv0 > 64: A(f"v_add_u32 {vPRD}, {(nv0-64)*64}, {vPRD}")
        A.label("L_vloop")
        for i in range(UN):
            n = nv0 + i
            vstep(n, plan[n][0], plan[n][1], (n - 64) & 1, (i + 1) * 64)
        A(f"""
        v_add_u32 {vPRD}, {UN*64}, {vPRD}
        s_sub_u32 s47, s47, 1
        s_cmp_lg_u32 s47, 0
        s_cbranch_scc1 L_vloop
        """)
        nv1 = nv0 + kV * UN
        voff = nv1
    else:
        nv1 = 64; voff = 64
    for n in range(nv1, 128):
        vstep(n, plan[n][0], plan[n][1], (n - 64) & 1, ((n - voff + 1) * 64) if n < 127 else None)
    stampat(4)
    if trace:
        A(f"""
        s_lshl_b32 s46, {sW}, 8
        v_lshlrev_b32 v44, 2, v0
        v_add_u32 v45, s46, v44
        ds_read_b32 v46, v45 offset:{TR}
        s_add_u32 s48, s28, 0x600000
        s_addc_u32 s49, s29, 0
        s_mov_b32 s50, 0x100000
        s_mov_b32 s51, 0x20000
        s_lshl_b32 s46, s2, 2
        s_add_u32 s46, s46, {sW}
        s_lshl_b32 s46, s46, 8
        v_add_u32 v44, s46, v44
        s_waitcnt lgkmcnt(0)
        buffer_store_dword v46, v44, s[48:51], 0 offen
        s_waitcnt vmcnt(0)
        """)
    A(f"""
    v_lshlrev_b32 v44, 7, v2
    v_lshl_or_b32 v44, v1, 2, v44
    s_lshl_b32 s46, {sW}, 9
    v_add_u32 v44, s46, v44
    s_lshl_b32 s46, {sW}, 3
    v_mov_b32 v45, s46
    s_nop 7
    s_mov_b32 exec_lo, 0x00ff00ff
    s_mov_b32 exec_hi, 0x00ff00ff
    """)
    for r in range(4):
        A(f"ds_write_b32 v44, v{ACC+r} offset:{OP + 32*r}")
    A(f"""
    s_mov_b64 exec, 1
    ds_write_b64 v45, v[60:61] offset:{ML}
    s_mov_b64 exec, -1
    s_waitcnt lgkmcnt(0)
    s_barrier
    s_branch L_join
    """)

    A.label("L_helper")
    X = 8
    SEL = 28
    HM = 36
    HB = [40, 44]
    HACC = 48
    W = 80
    vA, vB_, vC = "v3", "v4", "v5"
    sWH = "s33"
    SX, SW1, SW2, SZ = 36, 40, 44, 48
    A(f"""
    s_sub_u32 {sWH}, {sW}, 4
    s_mul_i32 s52, {sB}, 1280
    s_mul_i32 s53, {sWH}, 320
    v_mul_u32_u24 v3, 80, v2
    v_add_u32 v3, s53, v3
    v_lshlrev_b32 v6, 5, v0
    s_mul_i32 s53, {sWH}, {160*8192}
    v_mul_u32_u24 v4, 40, v2
    v_lshlrev_b32 v4, 13, v4
    v_lshl_or_b32 v4, v1, 4, v4
    v_add_u32 v4, s53, v4
    s_lshl_b32 s54, {sH}, 8
    s_waitcnt lgkmcnt(0)
    s_add_u32 s36, s4, s52
    s_addc_u32 s37, s5, 0
    s_mov_b32 s38, 1280
    s_mov_b32 s39, 0x20000
    s_add_u32 s40, s10, s54
    s_addc_u32 s41, s11, 0
    s_sub_u32 s42, {640*8192}, s54
    s_mov_b32 s43, 0x20000
    s_mov_b32 s48, s22
    s_mov_b32 s49, s23
    s_mov_b32 s50, 1280
    s_mov_b32 s51, 0x20000
    """)
    if not stag:
        for i in range(5):
            A(f"buffer_load_dwordx4 v[{X+4*i}:{X+4*i+3}], v3, s[36:39], 0 offen offset:{16*i}")
        A("s_mov_b32 s55, 0")
        for j in range(40):
            A(f"buffer_load_dwordx4 v[{W+4*j}:{W+4*j+3}], v4, s[40:43], s55 offen {wpol}")
            if j < 39:
                A("s_add_u32 s55, s55, 8192")
    else:
        A(f"""
        s_cmp_ge_u32 {sB}, 5
        s_cselect_b32 s56, 5, 0
        s_sub_u32 s56, {sB}, s56
        s_lshl_b32 s57, s56, 4
        """)
        for i in range(5):
            A(f"buffer_load_dwordx4 v[{X+4*i}:{X+4*i+3}], v3, s[36:39], s57 offen")
            if i < 4:
                A("s_add_u32 s57, s57, 16")
                A("s_cmp_eq_u32 s57, 80")
                A("s_cselect_b32 s57, 0, s57")
        A("s_lshl_b32 s55, s56, 16")
        for j in range(40):
            A(f"buffer_load_dwordx4 v[{W+4*j}:{W+4*j+3}], v4, s[40:43], s55 offen {wpol}")
            if j < 39:
                A("s_add_u32 s55, s55, 8192")
                if j % 8 == 7:
                    A(f"s_cmp_eq_u32 s55, {40*8192}")
                    A("s_cselect_b32 s55, 0, s55")
    A(f"""
    buffer_load_dwordx4 v[68:71], v6, s[36:39], 0 offen
    buffer_load_dwordx4 v[72:75], v6, s[36:39], 0 offen offset:16
    buffer_load_dwordx4 v[240:243], v6, s[48:51], 0 offen
    buffer_load_dwordx4 v[244:247], v6, s[48:51], 0 offen offset:16
    """)
    NEXTRA = 4
    build_masks(HM, "v5", "v7")
    A(f"""
    v_and_b32 v5, 1, v1
    v_cmp_eq_u32 vcc, 1, v5
    v_mov_b32 v5, 0x0c0c0100
    v_mov_b32 v7, 0x01000c0c
    v_cndmask_b32 v76, v5, v7, vcc
    v_mov_b32 v5, 0x0c0c0302
    v_mov_b32 v7, 0x03020c0c
    v_cndmask_b32 v77, v5, v7, vcc
    v_lshrrev_b32 v5, 1, v1
    v_mov_b32 v7, 0x0c0c0c0c
    """)
    for r in range(4):
        A(f"""
        v_cmp_eq_u32 vcc, {r}, v5
        s_nop 1
        v_cndmask_b32 v{SEL+r}, v7, v76, vcc
        v_cndmask_b32 v{SEL+4+r}, v7, v77, vcc
        """)
    A(f"""
    v_mov_b32 v5, 0
    v_mov_b32 v7, {CNT}
    s_cmp_eq_u32 {sWH}, 0
    s_cbranch_scc0 L_nocnt
    s_mov_b64 exec, 1
    ds_write_b32 v7, v5
    s_mov_b64 exec, -1
    """)
    A.label("L_nocnt")
    def bperm(j, dst):
        xr = X + (j >> 1)
        so = SEL + 4 * (j & 1)
        for r in range(4):
            A(f"v_perm_b32 v{dst+r}, v{xr}, v{xr}, v{so+r}")
    def gemv40(acc, waitfn):
        waitfn(-1)
        bperm(0, HB[0])
        for j in range(40):
            if j + 1 < 40:
                bperm(j + 1, HB[(j + 1) & 1])
            else:
                A("s_nop 1")
            waitfn(j)
            c = "0" if j == 0 else f"v[{acc}:{acc+3}]"
            A(f"v_mfma_f32_16x16x32_bf16 v[{acc}:{acc+3}], v[{W+4*j}:{W+4*j+3}], v[{HB[j&1]}:{HB[j&1]+3}], {c}")
    def wq_wait(j):
        if j < 0:
            A(f"s_waitcnt vmcnt({40+NEXTRA})")
            stampat(6)
        else:
            A(f"s_waitcnt vmcnt({39-j+NEXTRA})")
            if j == 0: stampat(7)
    gemv40(HACC, wq_wait)
    A(f"""
    v_lshlrev_b32 v5, 7, v2
    v_lshl_or_b32 v5, v1, 2, v5
    s_lshl_b32 s55, {sWH}, 9
    v_add_u32 v5, s55, v5
    s_nop 7
    s_mov_b32 exec_lo, 0x00ff00ff
    s_mov_b32 exec_hi, 0x00ff00ff
    """)
    for r in range(4):
        A(f"ds_write_b32 v5, v{HACC+r} offset:{QP + 32*r}")
    A("""
    s_mov_b64 exec, -1
    s_waitcnt lgkmcnt(0)
    """)
    stampat(1)
    A("""
    s_barrier
    s_setprio 0
    """)
    A("s_waitcnt vmcnt(0)")
    A("v_dot2_f32_bf16 v6, v68, v240, 0")
    for i in range(1, 4):
        A(f"v_dot2_f32_bf16 v6, v{68+i}, v{240+i}, v6")
    for i in range(4):
        A(f"v_dot2_f32_bf16 v6, v{72+i}, v{244+i}, v6")
    A("s_nop 2")
    allreduce("v_add_f32", "v6", "v7")
    A(f"""
    v_mul_f32 v6, {hex(f2u(-math.log2(math.e)))}, v6
    v_exp_f32 v6, v6
    s_nop 0
    v_add_f32 v6, 1.0, v6
    v_rcp_f32 v78, v6
    s_nop 0
    v_sub_f32 v79, 1.0, v78
    """)
    vG, vG1 = "v78", "v79"
    A(f"""
    s_cmp_ge_u32 {sH}, 27
    s_cbranch_scc1 L_noffn
    s_lshl_b32 s54, {sH}, 7
    s_add_u32 s40, s16, s54
    s_addc_u32 s41, s17, 0
    s_sub_u32 s42, {640*3456}, s54
    s_add_u32 s44, s18, s54
    s_addc_u32 s45, s19, 0
    s_mov_b32 s46, s42
    s_mov_b32 s47, 0x20000
    s_mul_i32 s53, {sWH}, {160*3456}
    v_mul_u32_u24 v4, {40*3456}, v2
    v_and_b32 v6, 7, v1
    v_lshl_add_u32 v4, v6, 4, v4
    v_add_u32 v4, s53, v4
    """)
    def ffn_off(j):
        if not stag:
            A(f"s_mov_b32 s58, {j*3456}")
        else:
            A(f"s_mul_i32 s58, s56, {8*3456}")
            A(f"s_add_u32 s58, s58, {j*3456}")
            A(f"s_cmp_ge_u32 s58, {40*3456}")
            A(f"s_cselect_b32 s59, {40*3456}, 0")
            A("s_sub_u32 s58, s58, s59")
    def ffn_issue(j0, j1):
        for (lo, srd) in ((0x00ff00ff, 40), (0xff00ff00, 44)):
            A(f"s_mov_b32 exec_lo, {hex(lo)}")
            A(f"s_mov_b32 exec_hi, {hex(lo)}")
            for j in range(j0, j1):
                ffn_off(j)
                A(f"buffer_load_dwordx4 v[{W+4*j}:{W+4*j+3}], v4, s[{srd}:{srd+3}], s58 offen {wpol}")
        A("s_mov_b64 exec, -1")
    hbf = min(hb, 20)
    for j0 in range(0, 40, hbf):
        ffn_issue(j0, min(40, j0 + hbf))
        A("s_waitcnt vmcnt(0)")
    gemv40(HACC, lambda j: None)
    A(f"""
    s_mul_i32 s54, {sH}, {64*1280}
    s_add_u32 s40, s20, s54
    s_addc_u32 s41, s21, 0
    s_mov_b32 s42, {64*1280}
    s_mul_i32 s53, {sWH}, {16*1280}
    v_mul_u32_u24 v4, {4*1280}, v2
    v_lshl_add_u32 v4, v1, 4, v4
    v_add_u32 v4, s53, v4
    """)
    cnt = 0
    for m in range(4):
        A(f"s_mov_b32 s55, {m*1280}")
        for c in range(5):
            k = m * 5 + c
            A(f"buffer_load_dwordx4 v[{W+4*k}:{W+4*k+3}], v4, s[40:43], s55 offen offset:{256*c} {wpol}")
            cnt += 1
            if cnt % hb == 0: A("s_waitcnt vmcnt(0)")
    A("s_mov_b32 exec_lo, 0x00ff00ff")
    A("s_mov_b32 exec_hi, 0x00ff00ff")
    for r in range(4):
        A(f"ds_write_b32 v5, v{HACC+r} offset:{FP + 32*r}")
    A(f"""
    s_waitcnt lgkmcnt(0)
    s_mov_b64 exec, -1
    v_mov_b32 v6, 1
    v_mov_b32 v7, {CNT}
    s_mov_b64 exec, 1
    ds_add_u32 v7, v6
    s_mov_b64 exec, -1
    """)
    A.label("L_spin")
    A(f"""
    ds_read_b32 v6, v7
    s_waitcnt lgkmcnt(0)
    v_readfirstlane_b32 s55, v6
    s_nop 3
    s_cmp_ge_u32 s55, 4
    s_cbranch_scc1 L_spun
    s_sleep 2
    s_branch L_spin
    """)
    A.label("L_spun")
    A(f"""
    s_lshl_b32 s55, {sWH}, 6
    v_lshlrev_b32 v6, 4, v2
    v_add_u32 v6, s55, v6
    """)
    A(f"ds_read_b128 v[8:11], v6 offset:{FP}")
    A(f"ds_read_b128 v[12:15], v6 offset:{FP+256}")
    for w in range(1, 4):
        A(f"ds_read_b128 v[16:19], v6 offset:{FP+512*w}")
        A(f"ds_read_b128 v[20:23], v6 offset:{FP+512*w+256}")
        A("s_waitcnt lgkmcnt(0)")
        for i in range(8):
            A(f"v_add_f32 v{8+i}, v{8+i}, v{16+i}")
    for m in range(4):
        A(f"v_max_f32 v{8+m}, 0, v{8+m}")
    for m in range(4):
        A(f"v_mul_f32 v{8+m}, v{8+m}, v{12+m}")
    for m in range(4):
        A(f"v_cvt_pk_bf16_f32 v{8+m}, v{8+m}, v{8+m}")
    A("s_waitcnt vmcnt(0)")
    for m in range(4):
        hb = HB[m & 1]
        for r in range(4):
            A(f"v_and_b32 v{hb+r}, v{8+m}, v{HM+r}")
        A("s_nop 1")
        for c in range(5):
            k = m * 5 + c
            cc = "0" if m == 0 else f"v[{HACC+4*c}:{HACC+4*c+3}]"
            A(f"v_mfma_f32_16x16x32_bf16 v[{HACC+4*c}:{HACC+4*c+3}], v[{W+4*k}:{W+4*k+3}], v[{hb}:{hb+3}], {cc}")
    A("s_nop 7")
    A("s_nop 1")
    for i in range(20):
        A(f"v_mul_f32 v{HACC+i}, {vG1}, v{HACC+i}")
    A("s_branch L_ffndone")
    A.label("L_noffn")
    for i in range(20):
        A(f"v_mov_b32 v{HACC+i}, 0")
    A.label("L_ffndone")
    stampat(2)
    A(f"""
    s_mul_i32 s54, {sH}, {128*1280}
    s_add_u32 s40, s12, s54
    s_addc_u32 s41, s13, 0
    s_mov_b32 s42, {128*1280}
    s_mov_b32 s43, 0x20000
    s_mul_i32 s53, {sWH}, {32*1280}
    v_mul_u32_u24 v4, {8*1280}, v2
    v_lshl_add_u32 v4, v1, 4, v4
    v_add_u32 v4, s53, v4
    """)
    cnt = 0
    for m in range(8):
        A(f"s_mov_b32 s55, {m*1280}")
        for c in range(5):
            k = m * 5 + c
            A(f"buffer_load_dwordx4 v[{W+4*k}:{W+4*k+3}], v4, s[40:43], s55 offen offset:{256*c} {wpol}")
            cnt += 1
            if cnt % hb == 0: A("s_waitcnt vmcnt(0)")
    A(f"""
    s_lshl_b32 s55, {sWH}, 7
    v_lshlrev_b32 v6, 5, v2
    v_add_u32 v6, s55, v6
    v_mov_b32 v7, 0
    s_mul_i32 s55, {sWH}, 2560
    v_lshlrev_b32 v5, 7, v2
    v_lshl_or_b32 v5, v1, 2, v5
    v_add_u32 v5, s55, v5
    s_waitcnt vmcnt(0)
    s_setprio 2
    """)
    stampat(3)
    A("s_barrier")
    stampat(4)
    A(f"ds_read_b128 v[8:11], v7 offset:{ML}")
    A(f"ds_read_b128 v[12:15], v7 offset:{ML+16}")
    OB = 240
    A(f"ds_read_b128 v[16:19], v6 offset:{OP}")
    A(f"ds_read_b128 v[20:23], v6 offset:{OP+16}")
    A(f"ds_read_b128 v[240:243], v6 offset:{OP+512}")
    A(f"ds_read_b128 v[244:247], v6 offset:{OP+512+16}")
    A(f"ds_read_b128 v[248:251], v6 offset:{OP+1024}")
    A(f"ds_read_b128 v[252:255], v6 offset:{OP+1024+16}")
    A(f"ds_read_b128 v[28:31], v6 offset:{OP+1536}")
    A(f"ds_read_b128 v[32:35], v6 offset:{OP+1536+16}")
    A("s_waitcnt lgkmcnt(8)")
    A(f"""
    v_max3_f32 v24, v8, v10, v12
    v_max_f32 v24, v24, v14
    s_mov_b32 s55, {hex(f2u(C_SCALE))}
    v_sub_f32 v8, v8, v24
    v_sub_f32 v10, v10, v24
    v_sub_f32 v12, v12, v24
    v_sub_f32 v14, v14, v24
    v_mul_f32 v8, s55, v8
    v_mul_f32 v10, s55, v10
    v_mul_f32 v12, s55, v12
    v_mul_f32 v14, s55, v14
    v_exp_f32 v8, v8
    v_exp_f32 v10, v10
    v_exp_f32 v12, v12
    v_exp_f32 v14, v14
    s_nop 0
    v_mul_f32 v25, v8, v9
    v_fmac_f32 v25, v10, v11
    v_fmac_f32 v25, v12, v13
    v_fmac_f32 v25, v14, v15
    v_rcp_f32 v25, v25
    s_nop 0
    v_mul_f32 v25, v25, {vG}
    v_mul_f32 v8, v8, v25
    v_mul_f32 v10, v10, v25
    v_mul_f32 v12, v12, v25
    v_mul_f32 v14, v14, v25
    s_waitcnt lgkmcnt(0)
    """)
    for i in range(8):
        A(f"v_mul_f32 v{68+i}, v8, v{16+i}")
    for i in range(8):
        A(f"v_fmac_f32 v{68+i}, v10, v{240+i}")
    for i in range(8):
        A(f"v_fmac_f32 v{68+i}, v12, v{248+i}")
    for i in range(8):
        A(f"v_fmac_f32 v{68+i}, v14, v{28+i}")
    if dbg:
        A(f"""
        s_add_u32 s48, s28, 0x200000
        s_addc_u32 s49, s29, 0
        s_mov_b32 s50, 0x100000
        s_mov_b32 s51, 0x20000
        s_lshl_b32 s55, s2, 9
        v_add_u32 v26, s55, v6
        buffer_store_dwordx4 v[68:71], v26, s[48:51], 0 offen
        buffer_store_dwordx4 v[72:75], v26, s[48:51], 0 offen offset:16
        s_waitcnt vmcnt(0)
        """)
    for i in range(8):
        A(f"v_cvt_pk_bf16_f32 v{68+i}, v{68+i}, v{68+i}")
    for m in range(8):
        hb = HB[m & 1]
        for r in range(4):
            A(f"v_and_b32 v{hb+r}, v{68+m}, v{HM+r}")
        A("s_nop 1")
        for c in range(5):
            k = m * 5 + c
            A(f"v_mfma_f32_16x16x32_bf16 v[{HACC+4*c}:{HACC+4*c+3}], v[{W+4*k}:{W+4*k+3}], v[{hb}:{hb+3}], v[{HACC+4*c}:{HACC+4*c+3}]")
    A("""
    s_nop 7
    s_mov_b32 exec_lo, 0x00ff00ff
    s_mov_b32 exec_hi, 0x00ff00ff
    """)
    for c in range(5):
        for r in range(4):
            A(f"ds_write_b32 v5, v{HACC+4*c+r} offset:{YP + 512*c + 32*r}")
    A("""
    s_mov_b64 exec, -1
    s_waitcnt lgkmcnt(0)
    """)
    A.label("L_join")
    A("s_barrier")
    stampat(5)
    A(f"""
    s_cmp_ge_u32 {sW}, 5
    s_cbranch_scc1 L_exit
    s_lshl_b32 s52, {sW}, 9
    v_lshlrev_b32 v3, 4, v0
    v_add_u32 v3, s52, v3
    s_mov_b32 exec_hi, 0
    ds_read_b128 v[8:11], v3 offset:{YP}
    ds_read_b128 v[12:15], v3 offset:{YP+2560}
    ds_read_b128 v[16:19], v3 offset:{YP+5120}
    ds_read_b128 v[20:23], v3 offset:{YP+7680}
    s_mul_i32 s53, {sB}, {32*2560}
    s_add_u32 s36, s28, s53
    s_addc_u32 s37, s29, 0
    s_mov_b32 s38, {32*2560}
    s_mov_b32 s39, 0x20000
    s_mul_i32 s53, {sH}, 2560
    s_add_u32 s53, s53, s52
    v_lshlrev_b32 v4, 4, v0
    s_waitcnt lgkmcnt(0)
    """)
    for i in range(4):
        A(f"v_add_f32 v{8+i}, v{8+i}, v{12+i}")
        A(f"v_add_f32 v{16+i}, v{16+i}, v{20+i}")
    for i in range(4):
        A(f"v_add_f32 v{8+i}, v{8+i}, v{16+i}")
    A(f"""
    buffer_store_dwordx4 v[8:11], v4, s[36:39], s53 offen sc1
    s_mul_i32 s54, {sB}, 5
    s_add_u32 s54, s54, {sW}
    s_lshl_b32 s54, s54, 2
    s_mov_b32 s40, s26
    s_mov_b32 s41, s27
    s_mov_b32 s42, 256
    s_mov_b32 s43, 0x20000
    v_mov_b32 v5, s54
    v_mov_b32 v6, 1
    s_waitcnt vmcnt(0)
    s_mov_b64 exec, 1
    buffer_atomic_add v6, v5, s[40:43], 0 offen sc0
    s_waitcnt vmcnt(0)
    v_readfirstlane_b32 s55, v6
    s_mov_b64 exec, -1
    s_nop 3
    s_cmp_eq_u32 s55, 31
    """)
    stampat(6)
    A(f"""
    s_cbranch_scc0 L_exit
    v_lshrrev_b32 v5, 5, v0
    v_mul_u32_u24 v5, 2560, v5
    v_and_b32 v6, 31, v0
    v_lshl_add_u32 v5, v6, 4, v5
    s_mov_b32 s53, s52
    """)
    for i in range(16):
        A(f"buffer_load_dwordx4 v[{8+4*i}:{8+4*i+3}], v5, s[36:39], s53 offen sc1")
        if i < 15:
            A("s_add_u32 s53, s53, 5120")
    for i in range(1, 16):
        A(f"s_waitcnt vmcnt({15-i})")
        for k in range(4):
            A(f"v_add_f32 v{8+k}, v{8+k}, v{8+4*i+k}")
    for k in range(4):
        A(f"v_mov_b32 v{12+k}, v{8+k}")
    A("s_nop 1")
    for k in range(4):
        A(f"v_permlane32_swap_b32 v{12+k}, v{8+k}")
    A("s_nop 1")
    for k in range(4):
        A(f"v_add_f32 v{8+k}, v{8+k}, v{12+k}")
    A(f"""
    v_cvt_pk_bf16_f32 v8, v8, v9
    v_cvt_pk_bf16_f32 v9, v10, v11
    s_mul_i32 s53, {sB}, 1280
    s_lshl_b32 s54, {sW}, 8
    s_add_u32 s53, s53, s54
    s_mov_b32 s44, s24
    s_mov_b32 s45, s25
    s_mov_b32 s46, 10240
    s_mov_b32 s47, 0x20000
    v_lshlrev_b32 v4, 3, v0
    s_mov_b32 exec_hi, 0
    buffer_store_dwordx2 v[8:9], v4, s[44:47], s53 offen
    """)
    if stamp:
        A("s_waitcnt vmcnt(0)")
    stampat(7)
    A.label("L_exit")
    stamp_flush()
    A.label("L_end")
    A("s_endpgm")
    return A.text()

HEADER = open("gated_mix__gqa_block_cached__glu_gated_reglu__decode.s.ref").read().split("; Override launch")[0]

def full(body, lds, vgpr=256, sgpr=102):
    return (HEADER + f"; @launch grid=(256,1,1) block=(512,1,1) lds={lds}\n"
        + '.amdgcn_target "amdgcn-amd-amdhsa--gfx950"\n.text\n'
        + f".globl {NAME}\n.p2align 8\n.type {NAME},@function\n{NAME}:\n" + body + "\n"
        + '.section .rodata,"a"\n.p2align 6\n'
        + f".amdhsa_kernel {NAME}\n  .amdhsa_next_free_vgpr {vgpr}\n  .amdhsa_next_free_sgpr {sgpr}\n  .amdhsa_accum_offset {vgpr}\n"
        + "  .amdhsa_group_segment_fixed_size 0\n  .amdhsa_kernarg_size 104\n  .amdhsa_user_sgpr_count 2\n"
        + "  .amdhsa_user_sgpr_kernarg_segment_ptr 1\n  .amdhsa_system_sgpr_workgroup_id_x 1\n.end_amdhsa_kernel\n")

if __name__ == "__main__":
    import argparse
    ap = argparse.ArgumentParser()
    ap.add_argument("-o", default="gated_mix__gqa_block_cached__glu_gated_reglu__decode.s")
    ap.add_argument("--R", type=int, default=4)
    ap.add_argument("--D", type=int, default=2)
    ap.add_argument("--pol", default="nt")
    ap.add_argument("--wpol", default="")
    ap.add_argument("--remap", type=int, default=0)
    ap.add_argument("--hb", type=int, default=4)
    ap.add_argument("--pat", default="")
    ap.add_argument("--early", action="store_true")
    ap.add_argument("--stag", action="store_true")
    ap.add_argument("--patv", default="")
    ap.add_argument("--vsw", type=int, default=64)
    ap.add_argument("--trace", action="store_true")
    ap.add_argument("--dbg", action="store_true")
    ap.add_argument("--stamp", action="store_true")
    a = ap.parse_args()
    open(a.o, "w").write(full(lds=LDS_BYTES + (1024 if a.trace else 0), body=gen(R=a.R, D=a.D, kvpol=a.pol, dbg=a.dbg, stamp=a.stamp, wpol=a.wpol, remap=a.remap, hb=a.hb, pat=[int(x) for x in a.pat.split(',')] if a.pat else None, late=not a.early, stag=a.stag, patv=[int(x) for x in a.patv.split(',')] if a.patv else None, vsw=a.vsw, trace=a.trace)))
    print("wrote", a.o, "lds", LDS_BYTES)
```
